```python
import torch

def _softmax(x, axis=-1):
    return torch.softmax(x, dim=axis)
def _gelu(x):
    return torch.nn.functional.gelu(x, approximate="tanh")
def _silu(x):
    return torch.nn.functional.silu(x)
def _sigmoid(x):
    return torch.sigmoid(x)
def _layernorm(x, axis=-1, eps=1e-5):
    m = x.mean(dim=axis, keepdim=True)
    v = x.var(dim=axis, keepdim=True, unbiased=False)
    return (x - m) / torch.sqrt(v + eps)
def _scatter_add(tgt, idx, src, axis=0):
    return tgt.clone().index_add_(axis, idx, src)
def _segment_sum(src, seg, n):
    out = torch.zeros((n,) + src.shape[1:], dtype=src.dtype)
    return out.index_add_(0, seg, src)
def _pad(x, pw):
    flat = tuple(v for pair in reversed(pw) for v in pair)
    return torch.nn.functional.pad(x, flat)

kernel_name = 'interleave_layers__sliding_local_dilated__dense_activation_squared_relu__prompt'

def setup_inputs():

    _w = (lambda a: (lambda t: t.to(torch.bfloat16) if t.is_floating_point() else t)(torch.as_tensor(a)))
    def _A_setup():
        B, S, D = 1, 2048, 1024
        return {
            "x": _w((lambda *s: torch.randn(*s, dtype=torch.bfloat16) * 0.05)(B, S, D)),
            "wqkv": _w((lambda *s: torch.randn(*s, dtype=torch.bfloat16) * 0.05)(D, 3 * D)),
            "wo": _w((lambda *s: torch.randn(*s, dtype=torch.bfloat16) * 0.05)(D, D)),
        }
    _A_in = _A_setup()

    def _B_setup():
        B, S, D, F = 1, 2048, 1024, 3584
        return {
            "x": _w((lambda *s: torch.randn(*s, dtype=torch.bfloat16) * 0.05)(B, S, D)),
            "w1": _w((lambda *s: torch.randn(*s, dtype=torch.bfloat16) * 0.05)(D, F)),
            "b1": _w((lambda *s: torch.randn(*s, dtype=torch.bfloat16) * 0.2)(F)),
            "w2": _w((lambda *s: torch.randn(*s, dtype=torch.bfloat16) * 0.05)(F, D)),
            "b2": _w((lambda *s: torch.randn(*s, dtype=torch.bfloat16) * 1.6)(D)),
        }
    _B_in = _B_setup()

    return {
        "A_x": _A_in["x"],
        "A_wqkv": _A_in["wqkv"],
        "A_wo": _A_in["wo"],
        "B_x": _B_in["x"],
        "B_w1": _B_in["w1"],
        "B_b1": _B_in["b1"],
        "B_w2": _B_in["w2"],
        "B_b2": _B_in["b2"],
    }

def reference(A_x, A_wqkv, A_wo, B_x, B_w1, B_b1, B_w2, B_b2):
    def _A_ref(x, wqkv, wo):
        B, S, D = x.shape
        H = 32; Dh = D // H
        W, dil = 8, 2
        qkv = (lambda x, *d: x.permute(*d))((x @ wqkv).reshape(B, S, 3, H, Dh), 2, 0, 3, 1, 4)
        q, k, v = qkv[0], qkv[1], qkv[2]
        scale = Dh ** -0.5
        pos = torch.arange(S)
        off = torch.arange(W) * dil
        idx = pos[:, None] - off[None, :]
        mask = idx >= 0
        idx_c = torch.where(mask, idx, 0).reshape(-1)
        kg = k[:, :, idx_c, :].reshape(B, H, S, W, Dh)
        vg = v[:, :, idx_c, :].reshape(B, H, S, W, Dh)
        logits = torch.einsum("bhsd,bhswd->bhsw", q, kg) * scale
        logits = torch.where(mask[None, None, :, :], logits, -1e9)
        attn = _softmax(logits, axis=-1)
        o = torch.einsum("bhsw,bhswd->bhsd", attn, vg)
        return (lambda x, *d: x.permute(*d))(o, 0, 2, 1, 3).reshape(B, S, D) @ wo

    def _B_ref(x, w1, b1, w2, b2):
        h = torch.einsum("bsd,df->bsf", x, w1) + b1
        zero = torch.zeros_like(h)
        r = torch.where(h > zero, h, zero)
        h = r * r
        out = torch.einsum("bsf,fd->bsd", h, w2) + b2
        return out

    x = A_x
    x = x + _A_ref(_layernorm(x, axis=-1), A_wqkv, A_wo)
    x = x + _B_ref(_layernorm(x, axis=-1), B_w1, B_b1, B_w2, B_b2)
    x = x + _A_ref(_layernorm(x, axis=-1), A_wqkv, A_wo)
    x = x + _B_ref(_layernorm(x, axis=-1), B_w1, B_b1, B_w2, B_b2)
    return x
```

```python
import re

_REG = re.compile(r"^(-|abs\(|\|)?\s*([vsa])(\d+)\)?\|?$")
_RANGE = re.compile(r"^(-)?([vsa])\[(\d+):(\d+)\]$")

MFMA_STATES = 1

TRANS = ("v_exp_f32", "v_log_f32", "v_rcp_f32", "v_rsq_f32", "v_sqrt_f32", "v_sin_f32", "v_cos_f32",
         "v_rcp_iflag_f32")


def regs_of(tok):
    tok = tok.strip()
    if tok in ("vcc",):
        return [("s", 106), ("s", 107)]
    if tok == "vcc_lo":
        return [("s", 106)]
    if tok == "vcc_hi":
        return [("s", 107)]
    if tok == "exec":
        return [("s", 126), ("s", 127)]
    if tok == "m0":
        return [("s", 124)]
    m = _RANGE.match(tok)
    if m:
        return [(m.group(2), k) for k in range(int(m.group(3)), int(m.group(4)) + 1)]
    m = _REG.match(tok)
    if m:
        return [(m.group(2), int(m.group(3)))]
    return []


def split_operands(s):
    out, depth, cur = [], 0, ""
    for ch in s:
        if ch in "[(":
            depth += 1
        if ch in "])":
            depth -= 1
        if ch == "," and depth == 0:
            out.append(cur.strip())
            cur = ""
        else:
            cur += ch
    if cur.strip():
        out.append(cur.strip())
    return out


class Ins:
    __slots__ = ("text", "op", "kind", "dst", "src", "srcC", "srcAB", "passes", "states", "dpp", "lds")


def classify(text):
    t = text.split(";")[0].strip()
    parts = t.split(None, 1)
    op = parts[0]
    rest = parts[1] if len(parts) > 1 else ""
    ops = split_operands(rest)
    toks = []
    mods = ""
    for k, o in enumerate(ops):
        bits = o.split()
        toks.append(bits[0])
        if len(bits) > 1:
            mods += " " + " ".join(bits[1:])
    ins = Ins()
    ins.text, ins.op = text, op
    ins.dst, ins.src, ins.srcC, ins.srcAB = [], [], [], []
    ins.passes = 0
    ins.states = 1
    ins.dpp = "_dpp" in op or "quad_perm" in mods or "row_" in mods
    ins.lds = False
    R = [regs_of(x) for x in toks]
    flat = lambda L: [r for x in L for r in x]
    if op == "s_nop":
        ins.kind = "nop"
        ins.states = int(toks[0], 0) + 1
    elif op.startswith("v_mfma"):
        ins.kind = "mfma"
        ins.dst = R[0]
        ins.srcAB = R[1] + R[2]
        ins.srcC = R[3]
        ins.src = ins.srcAB + ins.srcC
        ins.passes = 8 if "32x32" in op else 4
        ins.states = MFMA_STATES
    elif op.startswith("v_permlane") and "swap" in op:
        ins.kind = "valu"
        ins.dst = R[0] + R[1]
        ins.src = R[0] + R[1]
    elif op.startswith("v_cmp"):
        ins.kind = "valu"
        ins.dst = R[0]
        ins.src = flat(R[1:])
    elif op in ("v_readfirstlane_b32", "v_readlane_b32"):
        ins.kind = "valu"
        ins.dst = R[0]
        ins.src = flat(R[1:])
    elif op.startswith("v_add_co") or op.startswith("v_sub_co") or op.startswith("v_addc_co") or op.startswith("v_mad_u64"):
        ins.kind = "valu"
        ins.dst = R[0] + R[1]
        ins.src = flat(R[2:])
    elif op.startswith("v_"):
        ins.kind = "valu"
        ins.dst = R[0]
        ins.src = flat(R[1:])
        if op.startswith("v_fmac") or op.startswith("v_dot2c") or op.startswith("v_pk_fmac"):
            ins.src = ins.src + R[0]
        if op.startswith("v_cndmask") and len(toks) == 3:
            ins.src = ins.src + regs_of("vcc")
    elif op.startswith("ds_read") or "_rtn_" in op or op.startswith("ds_bpermute") or op.startswith("ds_permute") or op.startswith("ds_swizzle"):
        ins.kind = "ds"
        ins.dst = R[0]
        ins.src = flat(R[1:])
    elif op.startswith("ds_"):
        ins.kind = "ds"
        ins.src = flat(R)
    elif op.startswith("buffer_load") or op.startswith("global_load"):
        ins.kind = "vmem"
        if " lds" in (" " + mods) or "_lds_" in op:
            ins.lds = True
            ins.src = flat(R) + regs_of("m0")
        else:
            ins.dst = R[0]
            ins.src = flat(R[1:])
    elif op.startswith("buffer_store") or op.startswith("global_store") or op.startswith("buffer_atomic") or op.startswith("global_atomic"):
        ins.kind = "vmem"
        ins.src = flat(R)
    elif op.startswith("buffer_") or op.startswith("global_"):
        ins.kind = "vmem"
    elif op.startswith("s_load") or op.startswith("s_memtime") or op.startswith("s_memrealtime"):
        ins.kind = "smem"
        ins.dst = R[0]
        ins.src = flat(R[1:])
    elif op.startswith("s_cmp") or op.startswith("s_cbranch") or op in ("s_branch", "s_barrier", "s_waitcnt", "s_endpgm", "s_setprio", "s_sleep") or op.startswith("s_bitcmp"):
        ins.kind = "salu"
        ins.src = flat(R)
    elif op.startswith("s_"):
        ins.kind = "salu"
        ins.dst = R[0]
        ins.src = flat(R[1:])
        if "saveexec" in op:
            ins.dst = ins.dst + regs_of("exec")
    else:
        raise ValueError("unknown op " + op)
    return ins


def _ov(a, b):
    return bool(set(a) & set(b))


def required(p, c):
    need = 0
    pv = [r for r in p.dst if r[0] in "va"]
    ps = [r for r in p.dst if r[0] == "s"]
    if p.kind == "valu":
        if c.kind == "mfma" and _ov(pv, c.src):
            need = max(need, 2)
        if c.kind == "valu":
            if p.op in TRANS and _ov(pv, c.src) and c.op not in TRANS:
                need = max(need, 1)
            if p.op in TRANS and _ov(pv, c.src):
                need = max(need, 1)
            if (c.op.startswith("v_permlane") or c.dpp) and _ov(pv, c.src):
                need = max(need, 2)
            if c.op in ("v_readfirstlane_b32", "v_readlane_b32") and _ov(pv, c.src):
                need = max(need, 1)
            if ps and _ov(ps, c.src):
                need = max(need, 4 if c.op in ("v_readlane_b32", "v_writelane_b32") else 2)
            if p.op.startswith("v_dot"):
                base = p.op.replace("_e32", "")
                if _ov(pv, c.src) or _ov(pv, c.dst):
                    same = c.op == p.op
                    if same:
                        toks = split_operands(c.text.split(";")[0].split(None, 1)[1])
                        ab = regs_of(toks[1].split()[0]) + regs_of(toks[2].split()[0])
                        if _ov(pv, ab):
                            need = max(need, 3)
                    else:
                        need = max(need, 3)
            if ("sdwa" in p.op or "op_sel" in p.text and not p.op.startswith("v_pk")) and _ov(pv, c.src):
                need = max(need, 1)
        if p.op.startswith("v_dot") and c.kind in ("vmem", "ds", "mfma") and _ov(pv, c.src):
            need = max(need, 3)
        if c.kind == "vmem" and ps and _ov(ps, c.src):
            need = max(need, 5)
        if c.kind in ("salu", "smem") and ps and _ov(ps, c.src):
            need = max(need, 1)
    if p.kind == "mfma":
        full = {4: 8, 8: 12}[p.passes]
        if c.kind == "mfma":
            if _ov(p.dst, c.srcAB):
                need = max(need, full)
            if _ov(p.dst, c.srcC):
                if set(p.dst) == set(c.srcC) and p.passes == c.passes:
                    pass
                else:
                    need = max(need, {4: 6, 8: 10}[p.passes])
            elif _ov(p.dst, c.dst):
                need = max(need, full)
        elif c.kind in ("valu", "vmem", "ds"):
            if _ov(p.dst, c.src) or _ov(p.dst, c.dst):
                need = max(need, full)
        if c.kind == "valu" and _ov(p.srcC, c.dst):
            need = max(need, {4: 3, 8: 7}[p.passes])
    if p.kind == "salu":
        if ("s", 124) in p.dst and c.kind == "vmem" and c.lds:
            need = max(need, 1)
    if p.kind == "vmem" and ("store_dwordx4" in p.op or "store_dwordx3" in p.op):
        toks = split_operands(p.text.split(";")[0].split(None, 1)[1])
        data = regs_of(toks[0].split()[0]) if p.op.startswith("buffer") else regs_of(toks[1].split()[0])
        if _ov(data, c.dst):
            need = max(need, 2)
    return need


class Asm:
    def __init__(self):
        self.lines = []
        self.hist = []
        self.nops_added = 0

    def raw(self, text):
        self.lines.append(text)

    def comment(self, text):
        self.lines.append("    ; " + text)

    def label(self, name):
        self.lines.append(name + ":")

    def reset_hist(self):
        self.hist = []

    def need(self, text):
        c = classify(text)
        dist = need = 0
        for p in reversed(self.hist):
            r = required(p, c)
            if r > dist:
                need = max(need, r - dist)
            dist += p.states
            if dist >= 20:
                break
        return need

    def i(self, text):
        c = classify(text)
        if c.kind != "nop":
            dist = 0
            need = 0
            for p in reversed(self.hist):
                r = required(p, c)
                if r > dist:
                    need = max(need, r - dist)
                dist += p.states
                if dist >= 20:
                    break
            while need > 0:
                n = min(need, 16)
                self._push(classify("s_nop %d" % (n - 1)))
                self.nops_added += 1
                need -= n
        self._push(c)

    def _push(self, c):
        self.lines.append("    " + c.text)
        self.hist.append(c)
        if len(self.hist) > 32:
            self.hist.pop(0)

    def drain(self, n=12):
        self.i("s_nop %d" % (n - 1))

    def text(self):
        return "\n".join(self.lines) + "\n"


def v(a, n=1):
    return "v%d" % a if n == 1 else "v[%d:%d]" % (a, a + n - 1)


def s(a, n=1):
    return "s%d" % a if n == 1 else "s[%d:%d]" % (a, a + n - 1)
```

```python
import sys, os, math, struct
sys.path.insert(0, os.path.dirname(os.path.abspath(__file__)))
import asmlib
asmlib.MFMA_STATES = 2
from asmlib import Asm, v, s, classify, required

NAME = "interleave_layers__sliding_local_dilated__dense_activation_squared_relu__prompt"
KA_X, KA_WQKV, KA_WO, KA_BX, KA_W1, KA_B1, KA_W2, KA_B2, KA_OUT, KA_DBG, KA_WS = [8 * i for i in range(11)]
S_, D_, F_ = 2048, 1024, 3584
MB1 = 1 << 20
WS_O, WS_X1, WS_H, WS_XB, WS_X2 = 0, 8 * MB1, 16 * MB1, 48 * MB1, 80 * MB1
WS_STQ = 84 * MB1
WS_STA = WS_STQ + 262144
WS_FL = 85 * MB1
WS_DUM = 128 * MB1
WS_STAMP = 96 * MB1
WS_BYTES = 128 * MB1
HBLK = 112 * 2048
XBYTES = S_ * D_ * 2
ONES = 0x3f803f80
SPIN = 0x20000
H0, MISC, H1 = 0, 65536, 98304
LDS_BYTES = 163840
C_Q, C_O, C_A, C_S, C_B = 0, 16, 24, 43, 44

OPT = dict(stamp=0, abl=0, only=0, spin=0x20000, fs=8, amap=2, psl=2, cap=2, cpf=1, pfq=1, g0g=2,
           q_x=32, q_sig=142, q_dg=7,
           o_pi=30, o_poll=74, o_h=2, o_dg=5, o_r=2, o_rg=4,
           a_pi=84, a_poll=126, a_h=3, a_dg=5, a_r=62, a_rg=3, a_st=74,
           b_pi=58, b_poll=104, b_h=3, b_dg=6, b_r=14, b_rg=6, b_s2=116)
FST = lambda: 512 << OPT["fs"]

SRD_X, SRD_W, SRD_WS, SRD_OUT = 8, 12, 16, 20
M_VAL, M_FIRST = 24, 26
S_WAVE, S_RHO, S_C, S_IDX, S_N, S_T0, S_T1, S_T2, S_CNT = range(32, 41)
S_XO, S_DT, S_LW, S_OO, S_PO, S_SO, S_E0, S_E1, S_E2, S_RO, S_P, S_TG2, S_XI, S_KW, S_ST = range(41, 56)
M_ODD, M_OWN, M_PREV = 56, 58, 62
S_PTR = 64
S_SC, S_U, S_B0, S_B1, S_OB, S_SG = 86, 87, 88, 89, 90, 91
S_STAMP = 92
S_XM, S_SW, M_SB = 96, 97, 98
VSIG = 124


def f32(x):
    return "0x%08x" % struct.unpack("<I", struct.pack("<f", x))[0]


def ptr(ka):
    return S_PTR + ka // 4


def areg(a, n):
    return "a[%d:%d]" % (a, a + n - 1)


class E(Asm):
    def __init__(self):
        super().__init__()
        self.ev = []
        self.ool = []
        self.nlab = 0
        self.prof = None

    def emit(self, it):
        if self.prof is not None and ("vm=" in it or "s_barrier" in it or "vccnz" in it or (OPT["stamp"] == 3 and "lg=" in it)):
            k = len(self.prof)
            self.prof.append(it.split("|")[0].replace("@wait ", "").replace("s_barrier", "BAR").split(",")[0].replace(" ", "_"))
            self.i(f"s_memtime {s(S_STAMP,2)}")
            self.emit1(it)
            for x in (f"s_memtime {s(S_STAMP+2,2)}", "s_waitcnt lgkmcnt(0)", f"s_sub_u32 {s(S_STAMP+2)}, {s(S_STAMP+2)}, {s(S_STAMP)}",
                      f"s_lshl_b64 exec, 1, {k}", f"v_add_u32 v{V_STAMP+1}, {s(S_STAMP+2)}, v{V_STAMP+1}", "s_mov_b64 exec, -1"):
                self.i(x)
        else:
            self.emit1(it)

    def emit1(self, it):
        for x in it.split("|"):
            x = x.strip()
            if x.startswith(":"):
                self.label(x[1:])
            elif x.startswith("@wait"):
                d = dict(p.split("=") for p in x.split()[1:])
                self.i("s_waitcnt vmcnt(0)")
                self.ev.append(("wait", len(self.lines) - 1, d.get("vm"), d.get("lg")))
            else:
                tag = None
                if "#" in x:
                    x, tag = [y.strip() for y in x.split("#")]
                k = classify(x).kind
                self.i(x)
                if k == "vmem":
                    self.ev.append(("vm", tag))
                elif k == "ds":
                    self.ev.append(("lg", tag))

    def need_it(self, it):
        x = it.split("|")[0].strip()
        if x.startswith(":") or x.startswith("@"):
            return 0
        return self.need(x.split("#")[0])

    def mark(self, what):
        self.ev.append((what,))

    def resolve(self):
        ev = self.ev
        for i, e in enumerate(ev):
            if e[0] != "wait":
                continue
            parts = []
            for cls, tags, mx, nm in (("vm", e[2], 63, "vmcnt"), ("lg", e[3], 15, "lgkmcnt")):
                if tags is None:
                    continue
                best = None
                for tag in tags.split(","):
                    if tag == "*":
                        best = 0
                        continue
                    n, j, wrapped, inloop = 0, i - 1, False, True
                    while True:
                        assert j >= 0, ("tag not found", tag)
                        x = ev[j]
                        if x[0] == "loop_end":
                            inloop = False
                        if x[0] == "role":
                            raise AssertionError(("tag not found", tag, self.lines[e[1] - 3:e[1] + 3]))
                        if x[0] == "loop_begin":
                            if wrapped and OPT["abl"]:
                                n = 99
                                break
                            assert not wrapped, ("tag not found in loop", tag)
                            wrapped = True
                            while ev[j][0] != "loop_end":
                                j += 1
                            j -= 1
                            continue
                        if x[0] == cls:
                            if x[1] == tag:
                                break
                            n += 1
                        j -= 1
                    best = n if best is None else min(best, n)
                parts.append(f"{nm}({min(best, mx)})")
            self.lines[e[1]] = "    s_waitcnt " + " ".join(parts)

    def srd(self, r, p, off, nbytes):
        if off:
            self.i(f"s_add_u32 {s(r)}, {s(p)}, 0x{off:x}")
            self.i(f"s_addc_u32 {s(r+1)}, {s(p+1)}, 0")
        else:
            self.i(f"s_mov_b32 {s(r)}, {s(p)}")
            self.i(f"s_mov_b32 {s(r+1)}, {s(p+1)}")
        self.i(f"s_mov_b32 {s(r+2)}, 0x{nbytes:x}")
        self.i(f"s_mov_b32 {s(r+3)}, 0x00020000")

    def lab(self, base):
        self.nlab += 1
        return f"L_{base}{self.nlab}"


def cost(it):
    return sum(1 for x in it.split("|") if not x.strip().startswith(":"))


def sched(a, mfmas, pre, post, streams, name=""):
    cap = OPT["cap"]
    streams = [[st] + list(items) for st, items in streams]
    if OPT["abl"] and mfmas[0] is not None:
        def keep(x):
            if not isinstance(x, str):
                return True
            b = OPT["abl"]
            if b & 1 and (x.startswith("v_") and not x.startswith("v_mfma") and "vccnz" not in x):
                return False
            if b & 2 and x.startswith("s_") and "m0" not in x:
                return False
            if b & 16 and (" lds #g" in x or "m0" in x):
                return False
            if b & 32 and ((x.startswith("buffer_") and " lds #g" not in x) or x.startswith("@wait vm")):
                return False
            if b & 128 and x.startswith("buffer_store_dwordx4"):
                return False
            if b & 256 and x.startswith("buffer_store_dword "):
                return False
            if b & 512 and x.startswith("buffer_load") and " lds #g" not in x:
                return False
            if b & 64 and (x.startswith("ds_") or x.startswith("@wait lg=qk") or x.startswith("@wait lg=vv")):
                return False
            return True
        streams = [[x for x in q if keep(x)] for q in streams]
        import re
        if OPT["abl"] & 16:
            streams = [[re.sub(" vm=g.", "", x) if isinstance(x, str) else x for x in q] for q in streams]
            pre = {m: [re.sub(" vm=g.", "", x) if isinstance(x, str) else x for x in l] for m, l in pre.items()}
        if OPT["abl"] & 64:
            streams = [[x.replace("lg=ex", "lg=x") if isinstance(x, str) else x for x in q] for q in streams]
        if OPT["abl"] & 4:
            streams = [[x.replace("s_cbranch_vccnz", "s_cbranch_execz") if isinstance(x, str) else x for x in q] for q in streams]
        if OPT["abl"] & 8:
            streams = [[x.replace("|s_barrier", "") if isinstance(x, str) else x for x in q] for q in streams]
            pre = {m: [x for x in l if x != "s_barrier"] for m, l in pre.items()}
    marks = {}
    n = len(mfmas)
    tail = mfmas[0] is None
    over = 0

    def head(q, m):
        while q:
            h = q[0]
            if isinstance(h, int):
                if h > m:
                    return None
                q.pop(0)
            elif isinstance(h, tuple) and h[0] == "gap":
                q[0] = m + h[1]
            elif isinstance(h, tuple) and h[0] == "after":
                if h[1] not in marks:
                    return None
                q.pop(0)
            elif isinstance(h, tuple):
                marks[h[1]] = m
                q.pop(0)
            else:
                return h
        return None

    for m in range(n):
        for it in pre.get(m, []):
            if isinstance(it, tuple):
                for q in streams:
                    head(q, m - 1)
                assert it[1] in marks, (name, "stream part not issued before slot", m, it)
            else:
                a.emit(it)
        if not tail:
            a.emit(mfmas[m])
        budget = cap - sum(cost(x) for x in pre.get(m + 1, []) if not isinstance(x, tuple))
        for it in post.get(m, []):
            a.emit(it)
            budget -= cost(it)
        over += max(0, -budget)
        nxt = classify(mfmas[(m + 1) % n]) if not tail else None
        while budget > 0:
            pick = None
            for q in streams:
                h = head(q, m)
                if h is None:
                    continue
                if pick is None and tail:
                    pick = q
                if a.need_it(h):
                    continue
                last = h.split("|")[-1].split("#")[0].strip()
                if nxt and not last.startswith(":") and not last.startswith("@") and required(classify(last), nxt) > 0:
                    continue
                pick = q
                break
            if pick is None:
                break
            h = pick.pop(0)
            a.emit(h)
            head(pick, m)
            if h.startswith("v_mfma"):
                budget = cap - sum(cost(x) for x in pre.get(m + 1, []) if not isinstance(x, tuple))
            else:
                budget -= cost(h)
    for q in streams:
        assert head(q, n) is None and not q, (name, "stream left over", q[:6], len(q))
    return marks


def mf(d, A, B, C):
    return f"v_mfma_f32_16x16x32_bf16 {v(d,4)}, {A}, {B}, {C}"


def poll(a, addr, data, tag, soff="0", srd=SRD_WS, cmp_=None, off=0):
    sp, back = a.lab("spin"), a.lab("back")
    ld = f"buffer_load_dword v{data}, v{addr}, {s(srd,4)}, {soff} offen sc1"
    cmp_ = cmp_ or f"v_cmp_ne_u32 vcc, 0, v{data}"
    o = [f":{sp}", f"s_mov_b32 {s(S_CNT)}, 0x{OPT['spin']:x}", f":{sp}_l", ld, f"s_sub_u32 {s(S_CNT)}, {s(S_CNT)}, 1",
         "s_waitcnt vmcnt(0)", cmp_, f"s_cbranch_scc1 {back}", f"s_cbranch_vccz {back}"]
    if OPT["psl"]:
        o.append(f"s_sleep {OPT['psl']}")
    o.append(f"s_branch {sp}_l")
    a.ool.append(o)
    st0 = stamp_it(1) + "|" if OPT["stamp"] == 1 and tag == "pl" else ""
    st1 = "|" + stamp_it(2) if OPT["stamp"] == 1 and tag == "pl" else ""
    return ld + f" #{tag}", f"{st0}{cmp_}|s_cbranch_vccnz {sp}|:{back}{st1}"


def signal(kind=None):
    if kind is not None:
        return [f"s_add_u32 {s(kind[0])}, {s(S_SG)}, {kind[1]}",
                f"buffer_store_dword v{VSIG}, v{VSIG}, {s(SRD_WS,4)}, {s(kind[0])} offen sc1"]
    return [f"buffer_store_dword v{VSIG}, v{VSIG}, {s(SRD_WS,4)}, {s(S_SG)} offen sc1",
            f"s_add_u32 {s(S_SG)}, {s(S_SG)}, {FST()}"]


V_STAMP = 125


def stamp_it(j):
    return (f"s_memrealtime {s(S_STAMP,2)}|s_waitcnt lgkmcnt(0)|s_lshl_b64 exec, 1, {s(S_N)}|"
            f"v_mov_b32 v{V_STAMP+j}, {s(S_STAMP)}|s_mov_b64 exec, -1")


def stamp_at(a, j, lane):
    if OPT["stamp"]:
        a.emit(f"s_memrealtime {s(S_STAMP,2)}|s_waitcnt lgkmcnt(0)|s_lshl_b64 exec, 1, {lane}|"
               f"v_mov_b32 v{V_STAMP+j}, {s(S_STAMP)}|s_mov_b64 exec, -1")


def stamp_store(a):
    if not OPT["stamp"]:
        return
    a.i(f"s_lshl_b32 {s(S_T0)}, {s(S_RHO)}, 6")
    a.i(f"s_add_u32 {s(S_T0)}, {s(S_T0)}, {s(S_C)}")
    a.i(f"s_lshl_b32 {s(S_T0)}, {s(S_T0)}, 2")
    a.i(f"s_add_u32 {s(S_T0)}, {s(S_T0)}, {s(S_WAVE)}")
    a.i(f"s_lshl_b32 {s(S_T0)}, {s(S_T0)}, 10")
    a.i(f"s_add_u32 {s(S_T0)}, {s(S_T0)}, 0x{WS_STAMP:x}")
    a.i("v_lshlrev_b32 v2, 2, v0")
    for j in range(3):
        a.i(f"buffer_store_dword v{V_STAMP+j}, v2, {s(SRD_WS,4)}, {s(S_T0)} offen offset:{256*j}")


def stats_items(a, addr, soff, P, X, Y, neg, rstd, std=None):
    sp, back = a.lab("sspin"), a.lab("sback")
    lds = [f"buffer_load_dwordx2 {v(P[t],2)}, v{addr}, {s(SRD_WS,4)}, {soff} offen offset:{128*t} sc1" for t in range(4)]
    red = [f"v_max3_u32 v{X}, v{P[0]}, v{P[0]+1}, v{P[1]}", f"v_max3_u32 v{Y}, v{P[1]+1}, v{P[2]}, v{P[2]+1}",
           f"v_max3_u32 v{X}, v{X}, v{P[3]}, v{P[3]+1}", f"v_max_u32 v{X}, v{X}, v{Y}"]
    cmp_ = f"v_cmp_eq_u32 vcc, -1, v{X}"
    a.ool.append([f":{sp}", f"s_mov_b32 {s(S_CNT)}, 0x{OPT['spin']:x}", f":{sp}_l", "s_sleep 1"] + lds +
                 [f"s_sub_u32 {s(S_CNT)}, {s(S_CNT)}, 1", "s_waitcnt vmcnt(0)"] + red +
                 [cmp_, f"s_cbranch_scc1 {back}", f"s_cbranch_vccnz {sp}_l", f"s_branch {back}"])
    issue = lds[:3] + [lds[3] + " #st"]
    S, Q = P[0], P[0] + 1
    calc = ["@wait vm=st"] + red + [f"{cmp_}|s_cbranch_vccnz {sp}|:{back}"]
    calc += [f"v_add_f32 v{X}, v{P[2]}, v{P[3]}", f"v_add_f32 v{Y}, v{P[2]+1}, v{P[3]+1}", ("mark", "sp"),
             f"v_add_f32 v{S}, v{S}, v{P[1]}", f"v_add_f32 v{Q}, v{Q}, v{P[1]+1}",
             f"v_add_f32 v{S}, v{S}, v{X}", f"v_add_f32 v{Q}, v{Q}, v{Y}",
             f"v_mov_b32 v{X}, v{S}", f"v_mov_b32 v{Y}, v{Q}",
             f"v_permlane32_swap_b32 v{S}, v{X}", f"v_permlane32_swap_b32 v{Q}, v{Y}",
             f"v_add_f32 v{S}, v{S}, v{X}", f"v_add_f32 v{Q}, v{Q}, v{Y}",
             f"v_mul_f32 v{neg}, {f32(-1.0/1024)}, v{S}", f"v_mul_f32 v{Q}, {f32(1.0/1024)}, v{Q}",
             f"v_fma_f32 v{Q}, -v{neg}, v{neg}, v{Q}", f"v_mov_b32 v{neg+1}, v{neg}",
             f"v_max_f32 v{Q}, 0, v{Q}", f"v_add_f32 v{Q}, {f32(1e-5)}, v{Q}",
             f"v_rsq_f32 v{rstd}, v{Q}", f"v_permlane16_swap_b32 v{neg}, v{neg+1}"]
    if std is not None:
        calc += [f"v_mul_f32 v{std}, v{Q}, v{rstd}"]
    calc += [f"v_mov_b32 v{rstd+1}, v{rstd}"]
    if std is not None:
        calc += [f"v_mov_b32 v{std+1}, v{std}"]
    calc += [f"v_permlane16_swap_b32 v{rstd}, v{rstd+1}"]
    if std is not None:
        calc += [f"v_permlane16_swap_b32 v{std}, v{std+1}"]
    return issue, calc


def stats_lane(a, dst, tmp):
    a.i(f"v_and_b32 v{dst}, 15, v0")
    a.i(f"v_lshlrev_b32 v{dst}, 3, v{dst}")
    a.i(f"v_lshrrev_b32 v{tmp}, 5, v0")
    a.i(f"v_lshl_add_u32 v{dst}, v{tmp}, 9, v{dst}")


def part_stats(F, T):
    S, Q, U = T, T + 1, T + 2
    o = [f"v_dot2_f32_bf16 v{S}, v{F}, {s(S_SC)}, 0", f"v_dot2_f32_bf16 v{Q}, v{F}, v{F}, 0"]
    for e in range(1, 4):
        o += [f"v_dot2_f32_bf16 v{S}, v{F+e}, {s(S_SC)}, v{S}", f"v_dot2_f32_bf16 v{Q}, v{F+e}, v{F+e}, v{Q}"]
    o += [f"v_permlane16_swap_b32 v{S}, v{Q}", f"v_add_f32 v{S}, v{S}, v{Q}", f"v_mov_b32 v{U}, v{S}",
          f"v_permlane32_swap_b32 v{S}, v{U}", f"v_add_f32 v{S}, v{S}, v{U}"]
    return o


def sel_regs(a, SEL, tmp):
    for r in range(8):
        a.i(f"v_mov_b32 v{SEL+r}, 0")
    a.i(f"v_mov_b32 v{tmp+1}, 0x3f80")
    a.i(f"v_and_b32 v{tmp}, 1, v0")
    a.i(f"v_lshlrev_b32 v{tmp}, 4, v{tmp}")
    a.i(f"v_lshlrev_b32 v{tmp}, v{tmp}, v{tmp+1}")
    for d in range(2):
        m = sum(1 << l for l in range(64) if (l >> 4) == ((l & 15) >> 2) and ((l >> 1) & 1) == d)
        a.i(f"s_mov_b32 exec_lo, 0x{m & 0xffffffff:x}")
        a.i(f"s_mov_b32 exec_hi, 0x{m >> 32:x}")
        a.i(f"v_mov_b32 v{SEL+d}, v{tmp}")
        a.i(f"v_mov_b32 v{SEL+4+2+d}, v{tmp}")
    a.i("s_mov_b64 exec, -1")


class Role:
    WV0 = 128
    late = 0

    def wreg(self, ks, nb):
        f = ks * self.NB + nb
        return areg(4 * f, 4) if f < 64 else v(self.WV0 + 4 * (f - 64), 4)

    def wreg2(self, ks, nb, h):
        f = ks * self.NB + nb
        return areg(4 * f + 2 * h, 2) if f < 64 else v(self.WV0 + 4 * (f - 64) + 2 * h, 2)

    def load_w(self, a, wp, wbytes, WRS, NP, PCOL, frag, stage0, NS, T, CS=None, extra=None, first=None):
        NST = self.NKS // 2
        NWI = 2 * NP
        VO, VA, VC, Z = T, T + NWI, T + NWI + self.NB, T + NWI + 2 * self.NB
        a.srd(SRD_W, ptr(wp), 0, wbytes)
        a.i(f"v_lshrrev_b32 v{Z}, 3, v0")
        a.i(f"v_and_b32 v{Z+1}, 2, v{Z}")
        a.i(f"v_lshlrev_b32 v{Z+1}, 1, v{Z+1}")
        a.i(f"v_and_b32 v{Z+2}, 7, v0")
        a.i(f"v_xor_b32 v{Z+1}, v{Z+1}, v{Z+2}")
        a.i(f"v_mul_u32_u24 v{Z}, {WRS}, v{Z}")
        a.i(f"v_lshl_add_u32 v{Z}, v{Z+1}, 4, v{Z}")
        a.i(f"s_mul_i32 {s(S_T1)}, {s(S_WAVE)}, {NWI}")
        for jj in range(NWI):
            a.i(f"s_add_u32 {s(S_T2)}, {s(S_T1)}, {jj}")
            a.i(f"s_and_b32 {s(S_T0)}, {s(S_T2)}, 7")
            a.i(f"s_mul_i32 {s(S_T0)}, {s(S_T0)}, {8*WRS}")
            a.i(f"s_lshr_b32 {s(S_T2)}, {s(S_T2)}, 3")
            a.i(f"s_mul_i32 {s(S_T2)}, {s(S_T2)}, {PCOL}")
            a.i(f"s_add_u32 {s(S_T2)}, {s(S_T2)}, {s(S_T0)}")
            a.i(f"v_add_u32 v{VO+jj}, {s(S_T2)}, v{Z}")
        a.i(f"s_mul_i32 {s(S_DT)}, {s(S_WAVE)}, {NWI*1024}")
        SB = NP * 8192

        def issue(st):
            for jj in range(NWI):
                a.i(f"s_add_u32 m0, {s(S_DT)}, {stage0 + (st % NS) * SB + jj * 1024}")
                a.emit(f"buffer_load_dwordx4 v{VO+jj}, {s(SRD_W,4)}, {s(S_KW)} offen lds #w{st}")
            a.i(f"s_add_u32 {s(S_KW)}, {s(S_KW)}, {64*WRS}")
            if extra:
                extra(st)

        for st in range(NS - 1):
            issue(st)
        a.i(f"v_lshrrev_b32 v{Z}, 4, v0")
        a.i(f"v_bfe_u32 v{Z+1}, v0, 2, 2")
        a.i(f"v_lshl_add_u32 v{Z}, v{Z}, 3, v{Z+1}")
        a.i(f"v_lshlrev_b32 v{Z}, 7, v{Z}")
        a.i(f"v_lshrrev_b32 v{Z+1}, 1, v{Z+1}")
        a.i(f"v_lshl_add_u32 v{Z}, v{Z+1}, 6, v{Z}")
        a.i(f"v_and_b32 v{Z+1}, 3, v0")
        a.i(f"v_lshl_add_u32 v{Z}, v{Z+1}, 4, v{Z}")
        for nb in range(self.NB):
            for x in frag(nb):
                a.i(x)
            a.i(f"v_xor_b32 v{VA+nb}, {s(S_T0)}, v{Z}")
        if CS is not None:
            assert Z % 2 == 0
            for r in range(4):
                a.i(f"v_mov_b32 v{Z+r}, 0x{ONES:x}")
        if first:
            first()
        for st in range(NST):
            for nb in range(self.NB):
                a.i(f"v_add_u32 v{VC+nb}, {stage0 + (st % NS) * SB}, v{VA+nb}")
            if OPT["stamp"] == 1:
                stamp_at(a, 0, 40 + st)
            a.emit(f"@wait vm=w{st}")
            a.i("s_barrier")
            if OPT["stamp"] == 1:
                stamp_at(a, 2, 40 + st)
            if st == 0:
                arrive(a)
            for kk in range(2):
                for nb in range(self.NB):
                    for h in range(2):
                        a.i(f"ds_read_b64_tr_b16 {self.wreg2(2*st+kk, nb, h)}, v{VC+nb} offset:{(32*kk+4*h)*128}")
            if st + NS - 1 < NST:
                issue(st + NS - 1)
            a.i("s_waitcnt lgkmcnt(0)")
            if CS is not None:
                for kk in range(2):
                    for nb in range(self.NB):
                        a.i(mf(CS + 4 * nb, self.wreg(2 * st + kk, nb), v(Z, 4), v(CS + 4 * nb, 4) if st + kk else "0"))
        a.i("s_barrier")

    def gemm(self, par, cinit=lambda mb, nb: "0"):
        NB, NKS, GS = self.NB, self.NKS, self.GS
        per = 2 * NB
        R = 4 * GS
        fr = lambda p, ks, mb: self.XR + 4 * ((p * 2 * NKS + 2 * ks + mb) % R)
        ms, pre, post = [], {}, {}
        for ks in range(NKS):
            for nb in range(NB):
                for mb in ((0, 1) if nb % 2 == 0 else (1, 0)):
                    d = self.acc(par, mb, nb)
                    ms.append(mf(d, self.wreg(ks, nb), v(fr(par, ks, mb), 4), v(d, 4) if ks else cinit(mb, nb)))
            if ks % GS == 0:
                pre.setdefault(ks * per, []).append("@wait lg=x")
                j = 0
                for k2 in range(ks + GS, ks + 2 * GS):
                    for mb in range(2):
                        p2, kk = (par, k2) if k2 < NKS else (1 - par, k2 - NKS)
                        post.setdefault(ks * per + j, []).append(self.xread(fr(p2, kk, mb), p2, kk, mb) + " #x")
                        j += 1
        return ms, pre, post

    def first_reads(self, a, par):
        R = 4 * self.GS
        for k2 in range(self.GS):
            for mb in range(2):
                a.emit(self.xread(self.XR + 4 * ((par * 2 * self.NKS + 2 * k2 + mb) % R), par, k2, mb))

    def landed(self, pre, k0, tag, lg=None, chk=None):
        m = ((k0 - self.GS) % self.NKS) * 2 * self.NB
        assert pre[m][0] == "@wait lg=x"
        chk = [chk] if isinstance(chk, str) else (chk or [])
        pre[m] = [("chk", c) for c in chk] + [f"@wait lg=x{',' + lg if lg else ''}" + (f" vm={tag}" if tag else ""), "s_barrier"]
        return m

    def xread(self, dst, par, ks, mb):
        return f"ds_read_b128 {v(dst,4)}, v{self.VX+par} offset:{(2*ks+mb)*1024}"

    def dma(self, par, g0, g1, gap):
        o, groups = [], self.GR
        for g in range(g0, g1):
            n, off = groups[g], 4096 * sum(groups[:g])
            lw = S_LW if n == groups[0] else S_B0
            o += [f"s_add_u32 m0, {s(lw)}, {(H1 if par else H0) + off}"]
            o += [f"s_add_u32 {s(S_DT)}, {s(S_XO)}, {off}"] if n == groups[0] else \
                 [f"s_add_u32 {s(S_DT)}, {s(S_XO)}, {off}|s_add_u32 {s(S_DT)}, {s(S_DT)}, {s(S_B1)}"]
            for j in range(n):
                o.append(f"buffer_load_dwordx4 v1, {s(SRD_WS,4)}, {s(S_DT)} offen offset:{1024*j} sc1 lds #g{g}")
                if j == n - 1:
                    o.append(("mark", f"g{g}"))
                o.append(("gap", OPT["g0g"] if (g == 0 and j < n - 1) else gap - (j == n - 1)))
        return o[:-1]

    def feed(self, a, par, pre, k0s, stride, otags, lg={}, early=False):
        n = self.name[0]
        h = OPT[n + "_h"]
        ms = []
        for g, k0 in enumerate(k0s[:3]):
            if k0 is None:
                ms.append(None)
                continue
            gl = g + 1 if k0s[g + 1] is None else g
            chk = [f"g{gl}"] if (g == 0 or gl >= h) else []
            ms.append(self.landed(pre, k0, f"g{gl}", lg=lg.get(g), chk=chk + ([lg[g]] if g in lg else [])))
        m3 = (k0s[3] - self.GS) * 2 * self.NB
        pre[m3] = [("chk", "P")] + pre[m3]
        pl_i, pl_c = poll(a, self.VFL, self.VPD, "pl", s(S_PO))
        tg = [f"s_add_u32 {s(S_XO)}, {s(S_XO)}, {stride}", f"s_min_u32 {s(S_XO)}, {s(S_XO)}, {s(S_XM)}"]
        d = self.late
        o = [OPT[n + "_r"]] + self.dma(par, h, 4, OPT[n + "_rg"]) + tg + [("mark", "tg")]
        p = [OPT[n + "_pi"] + d, pl_i, ("mark", "pi"), ("after", "tg"), ("after", "o"), OPT[n + "_poll"] + d, f"@wait vm=pl,g3,{otags}"]
        if early:
            p += ["s_barrier", ("mark", "P")] + signal() + [pl_c, "s_barrier"]
        else:
            p += [pl_c, "s_barrier", ("mark", "P")] + signal()
        p += self.dma(1 - par, 0, h, OPT[n + "_dg"]) + [("mark", "dma"), f"s_add_u32 {s(S_PO)}, {s(S_PO)}, {FST()}"]
        return p, o, ms

    def loop(self, a, nit, enter=0):
        nm = self.name
        a.i("s_waitcnt vmcnt(0) lgkmcnt(0)")
        a.i("s_barrier")
        self.first_reads(a, enter)
        a.i(f"s_mov_b32 {s(S_N)}, 0")
        if OPT["stamp"] == 4:
            a.emit(stamp_it(0))
            a.emit(stamp_it(1).replace("realtime", "time"))
        if OPT["stamp"] in (2, 3):
            a.i("s_mov_b32 exec_hi, 0x7fffffff")
            a.i(f"v_mov_b32 v{V_STAMP+1}, 0")
            a.i("s_mov_b64 exec, -1")
        a.i("s_waitcnt lgkmcnt(0)")
        if enter:
            a.i(f"s_branch L_{nm}_b1")
        a.drain(8)
        a.mark("loop_begin")
        l0 = len(a.lines)
        n0 = a.nops_added
        for par in range(2):
            a.label(f"L_{nm}_b{par}")
            if OPT["stamp"] in (1, 2, 3):
                a.emit(stamp_it(0))
            if OPT["stamp"] in (2, 3):
                a.prof = []
            self.body(a, par, False)
            if OPT["stamp"] in (2, 3):
                a.raw(f"; PROF {nm} " + " ".join(a.prof))
                a.prof = None
            a.i(f"s_add_u32 {s(S_N)}, {s(S_N)}, 1")
        a.i(f"s_cmp_lt_u32 {s(S_N)}, {nit}")
        a.i(f"s_cbranch_scc1 L_{nm}_b0")
        a.mark("loop_end")
        t = Asm()
        t.hist = list(a.hist)
        for ln in a.lines[l0:l0 + 30]:
            if ln.startswith(";"):
                continue
            if not ln.endswith(":") and not ln.strip().startswith("s_nop"):
                assert t.need(ln.strip()) == 0, ("back edge hazard", ln)
            if not ln.endswith(":"):
                t.i(ln.strip())
        ninst = sum(1 for x in a.lines[l0:] if not x.endswith(":"))
        nm_ = sum(1 for x in a.lines[l0:] if "v_mfma" in x)
        print(f"  {nm}: loop {ninst} instr, {nm_} mfma, {a.nops_added - n0} nops, marks {getattr(self, 'marks', None)}")
        a.drain(8)
        if OPT["stamp"]:
            a.emit(stamp_it(0))
        if OPT["stamp"] == 4:
            a.emit(stamp_it(1).replace("realtime", "time"))
            a.raw("; STAMP4")
        self.body(a, 0, True)
        self.finish(a)
        a.i("s_waitcnt vmcnt(0)")
        stamp_at(a, 0, 63)
        stamp_store(a)
        a.i("s_endpgm")
        for o in a.ool:
            a.reset_hist()
            a.mark("role")
            for x in o:
                a.emit(x)
        a.ool = []

    def finish(self, a):
        pass

    def flag_addr(self, a, dst, c0, n, sh=0):
        a.i(f"s_lshl_b32 {s(S_T0)}, {s(S_RHO)}, 6")
        a.i(f"s_add_u32 {s(S_T0)}, {s(S_T0)}, {c0}")
        a.i(f"s_lshl_b32 {s(S_T0)}, {s(S_T0)}, {OPT['fs']}")
        a.i(f"v_lshl_add_u32 v{dst}, v0, {OPT['fs']+sh}, {s(S_T0)}")
        only_poller(a, dst, n)

    def first_block(self, a, cnt, xm):
        a.i(f"s_add_u32 {s(S_XM)}, {s(S_XO)}, {xm}")
        a.i(f"s_mov_b32 {s(S_PO)}, 0x{WS_FL + (cnt + 2) * FST():x}")
        ld, chk = poll(a, self.VFL, self.VPD, "p0", s(S_PO))
        for x in [ld, "@wait vm=p0", chk, "s_barrier"] + self.dma(0, 0, OPT[self.name[0] + "_h"], 0):
            if not isinstance(x, tuple):
                a.emit(x)
        a.i(f"s_add_u32 {s(S_PO)}, {s(S_PO)}, {FST()}")


def only_poller(a, dst, n):
    a.i(f"s_cmp_eq_u32 {s(S_WAVE)}, 0")
    a.i(f"s_cselect_b32 {s(S_T0)}, {n}, 0")
    a.i(f"v_cmp_le_u32 vcc, {s(S_T0)}, v0")
    a.i(f"v_cndmask_b32 v{dst}, v{dst}, 2.0, vcc")


def arrive(a):
    lb = a.lab("arr")
    a.i(f"s_cmp_lg_u32 {s(S_WAVE)}, 3")
    a.i(f"s_cbranch_scc1 {lb}")
    a.srd(SRD_OUT, ptr(KA_DBG), 0, 256)
    a.i(f"s_and_b32 {s(S_T0)}, s2, 15")
    a.i(f"s_lshl_b32 {s(S_T0)}, {s(S_T0)}, 4")
    a.i("v_mov_b32 v123, 1")
    a.i(f"buffer_atomic_add v123, v{VSIG}, {s(SRD_OUT,4)}, {s(S_T0)} offen")
    a.label(lb)


def all_arrived(a, T):
    lb = a.lab("arv")
    a.i(f"s_cmp_lg_u32 {s(S_WAVE)}, 0")
    a.i(f"s_cbranch_scc1 {lb}")
    a.srd(SRD_OUT, ptr(KA_DBG), 0, 256)
    a.i(f"v_and_b32 v{T}, 15, v0")
    a.i(f"v_lshlrev_b32 v{T}, 4, v{T}")
    ld, chk = poll(a, T, T + 1, "p0", srd=SRD_OUT, cmp_=f"v_cmp_gt_u32 vcc, 16, v{T+1}")
    for x in [ld, "s_waitcnt vmcnt(0)", chk]:
        a.emit(x)
    a.label(lb)


def x_stats_load(a, T, odd):
    a.srd(SRD_X, ptr(KA_X), 0, XBYTES)
    a.i(f"s_min_u32 {s(S_SO)}, {s(S_IDX)}, 15")
    a.i(f"s_lshl_b32 {s(S_SO)}, {s(S_SO)}, 1")
    a.i(f"s_lshl_b32 {s(S_T0)}, {s(S_RHO)}, 5")
    a.i(f"s_add_u32 {s(S_SO)}, {s(S_SO)}, {s(S_T0)}")
    a.i(f"s_add_u32 {s(S_SO)}, {s(S_SO)}, {odd}")
    a.i(f"s_lshl_b32 {s(S_T0)}, {s(S_SO)}, 15")
    a.i(f"s_lshl_b32 {s(S_T1)}, {s(S_WAVE)}, 9")
    a.i(f"s_add_u32 {s(S_T0)}, {s(S_T0)}, {s(S_T1)}")
    a.i(f"s_add_u32 {s(S_T1)}, {s(S_T0)}, 16384")
    a.i(f"v_lshrrev_b32 v{T+32}, 3, v0")
    a.i(f"v_and_b32 v{T+33}, 7, v0")
    a.i(f"v_lshlrev_b32 v{T+33}, 4, v{T+33}")
    a.i(f"v_lshl_add_u32 v{T+32}, v{T+32}, 11, v{T+33}")
    for hh in range(2):
        for kp in range(4):
            a.emit(f"buffer_load_dwordx4 {v(T+16*hh+4*kp,4)}, v{T+32}, {s(SRD_X,4)}, {s(S_T0+hh)} offen offset:{128*kp} #xs")


def x_stats_calc(a, T):
    R = T + 32
    a.emit("@wait vm=xs")
    for j in range(4):
        for e in range(8):
            src = T + 8 * j + e
            a.i(f"v_dot2_f32_bf16 v{R+2*j}, v{src}, {s(S_SC)}, {v(R+2*j) if e else 0}")
            a.i(f"v_dot2_f32_bf16 v{R+2*j+1}, v{src}, v{src}, {v(R+2*j+1) if e else 0}")
    for mod in ("quad_perm:[1,0,3,2]", "quad_perm:[2,3,0,1]", "row_half_mirror"):
        for r in range(8):
            a.i(f"v_add_f32_dpp v{R+r}, v{R+r}, v{R+r} {mod} row_mask:0xf bank_mask:0xf")
    for j in range(1, 4):
        a.i(f"s_mov_b32 exec_lo, 0x{0x01010101 << j:x}")
        a.i(f"s_mov_b32 exec_hi, 0x{0x01010101 << j:x}")
        a.i(f"v_mov_b32 v{R}, v{R+2*j}")
        a.i(f"v_mov_b32 v{R+1}, v{R+2*j+1}")
    a.i("s_mov_b64 exec, -1")
    a.i(f"v_min_u32 v{R}, -2, v{R}")
    a.i(f"v_min_u32 v{R+1}, -2, v{R+1}")
    a.i(f"v_and_b32 v{R+2}, 1, v0")
    a.i(f"v_lshlrev_b32 v{R+2}, 7, v{R+2}")
    a.i(f"v_bfe_u32 v{R+3}, v0, 1, 1")
    a.i(f"v_lshl_add_u32 v{R+2}, v{R+3}, 6, v{R+2}")
    a.i(f"v_and_b32 v{R+3}, 0x38, v0")
    a.i(f"v_add_u32 v{R+2}, v{R+3}, v{R+2}")
    a.i(f"s_sub_u32 {s(S_SO)}, 127, {s(S_SO)}")
    a.i(f"s_lshl_b32 {s(S_SO)}, {s(S_SO)}, 10")
    a.i(f"s_lshl_b32 {s(S_T0)}, {s(S_WAVE)}, 8")
    a.i(f"s_add_u32 {s(S_SO)}, {s(S_SO)}, {s(S_T0)}")
    a.i(f"s_add_u32 {s(S_SO)}, {s(S_SO)}, 0x{WS_STQ:x}")
    a.i(f"s_cmp_lt_u32 {s(S_IDX)}, 16")
    a.i(f"s_cselect_b32 {s(S_SO)}, {s(S_SO)}, 0x{WS_DUM:x}")


def x_stats_store(a, T):
    R = T + 32
    a.i("s_mov_b32 exec_lo, 0x0f0f0f0f")
    a.i("s_mov_b32 exec_hi, 0x0f0f0f0f")
    a.emit(f"buffer_store_dwordx2 {v(R,2)}, v{R+2}, {s(SRD_WS,4)}, {s(S_SO)} offen sc1")
    a.i("s_mov_b64 exec, -1")


def blk_base(a, dst, region, stride, add=0):
    a.i(f"s_mul_i32 {s(dst)}, {s(S_RHO)}, {32*stride}")
    a.i(f"s_add_u32 {s(dst)}, {s(dst)}, 0x{(region + add) & 0xffffffff:x}")


def helper_start(a, odd):
    T = 16
    x_stats_load(a, T, odd)
    x_stats_calc(a, T)
    x_stats_store(a, T)


class Q(Role):
    name, NB, NKS, GS = "q", 3, 32, 2
    VX, VD, WQK, WVV, RDA, RDB, VFL, VCAP, VST, SEL, NEG, VST2 = 2, 6, 7, 8, 9, 10, 11, 12, 13, 14, 18, 19
    ACC, XR, CS, NM, RS, VPD, VTG, TT = 20, 68, 100, 112, 114, 116, 117, 118
    SL = 6144

    def acc(self, par, mb, nb):
        return self.ACC + 24 * par + 4 * (2 * nb + mb)

    def xread(self, dst, par, ks, mb):
        return f"ds_read_b128 {v(dst,4)}, v{self.VX+2*par+(ks&1)} offset:{((ks>>1)*2+mb)*2048}"

    def xnext(self):
        return [f"s_cmp_eq_u32 {s(S_N)}, {s(S_SW)}|s_cselect_b32 {s(S_E0)}, 31, -2|s_cselect_b64 {s(SRD_X,2)}, {s(S_B0,2)}, {s(SRD_X,2)}",
                f"s_add_u32 {s(S_RO)}, {s(S_RO)}, {s(S_E0)}", f"s_max_i32 {s(S_E0)}, {s(S_RO)}, 0",
                f"s_lshl_b32 {s(S_XO)}, {s(S_E0)}, 15"]

    def xdma(self, par, gap=True):
        o = []
        for kp in range(16):
            o += [f"s_add_u32 m0, {s(S_LW)}, {(H1 if par else H0) + kp*4096 - kp*128}",
                  f"buffer_load_dwordx4 v{self.VD}, {s(SRD_X,4)}, {s(S_XO)} offen offset:{kp*128} sc1 lds #g{kp//4}"]
            if gap:
                o += ([("mark", f"g{kp//4}")] if kp % 4 == 3 else []) + [("gap", OPT["q_dg"] - 1)]
        return o

    def gen(self, a):
        Z = self.ACC
        a.i(f"s_lshr_b32 {s(S_P)}, {s(S_WAVE)}, 1")
        a.i(f"s_lshl_b32 {s(S_RO)}, {s(S_RHO)}, 5")
        a.i(f"s_add_u32 {s(S_RO)}, {s(S_RO)}, 31")
        a.i(f"s_sub_u32 {s(S_RO)}, {s(S_RO)}, {s(S_P)}")
        a.i(f"s_lshl_b32 {s(S_XO)}, {s(S_RO)}, 15")
        a.i(f"s_lshl_b32 {s(S_LW)}, {s(S_WAVE)}, 10")
        a.srd(SRD_X, ptr(KA_X), 0, XBYTES)
        a.i(f"v_lshrrev_b32 v{Z}, 3, v0")
        a.i(f"v_and_b32 v{Z+1}, 6, v{Z}")
        a.i(f"v_and_b32 v{Z+2}, 7, v0")
        a.i(f"v_xor_b32 v{Z+1}, v{Z+1}, v{Z+2}")
        a.i(f"v_lshlrev_b32 v{Z+1}, 4, v{Z+1}")
        a.i(f"s_and_b32 {s(S_T0)}, {s(S_WAVE)}, 1")
        a.i(f"s_lshl_b32 {s(S_T0)}, {s(S_T0)}, 14")
        a.i(f"v_lshl_add_u32 v{self.VD}, v{Z}, 11, v{Z+1}")
        a.i(f"v_add_u32 v{self.VD}, {s(S_T0)}, v{self.VD}")
        xd = self.xdma(1, False)

        def extra(st):
            for x in xd[8 * st: 8 * st + 8]:
                a.emit(x)

        def frag(nb):
            return [f"s_lshl_b32 {s(S_T0)}, {s(S_P)}, 6", f"s_and_b32 {s(S_T1)}, {s(S_WAVE)}, 1",
                    f"s_lshl_b32 {s(S_T1)}, {s(S_T1)}, 3", f"s_add_u32 {s(S_T0)}, {s(S_T0)}, {s(S_T1)}",
                    f"s_add_u32 {s(S_T0)}, {s(S_T0)}, {nb*8192}"]
        a.i(f"s_lshl_b32 {s(S_KW)}, {s(S_IDX)}, 7")
        self.load_w(a, KA_WQKV, D_ * 3 * D_ * 2, 3 * D_ * 2, 3, 2048, frag, H0, 4, self.XR, CS=self.CS, extra=extra,
                    first=lambda: self.consts(a))
        stamp_at(a, 1, 63)
        all_arrived(a, Z)
        a.i(f"s_mov_b32 {s(S_N)}, -1")
        for x in self.xnext():
            a.emit(x)
        self.loop(a, 33, enter=1)

    def consts(self, a):
        Z = self.ACC
        DH = S_T1
        a.i(f"s_add_u32 {s(S_B0)}, {s(ptr(KA_WS))}, 0x{WS_X2:x}")
        a.i(f"s_addc_u32 {s(S_B1)}, {s(ptr(KA_WS)+1)}, 0")
        a.i(f"s_sub_u32 {s(S_SW)}, 15, {s(S_P)}")
        a.i(f"s_and_b32 {s(DH)}, {s(S_WAVE)}, 1")
        a.i(f"v_and_b32 v{Z}, 15, v0")
        a.i(f"v_lshrrev_b32 v{Z+1}, 4, v0")
        a.i(f"v_and_b32 v{Z+2}, 6, v{Z}")
        a.i(f"v_xor_b32 v{Z+2}, v{Z+1}, v{Z+2}")
        a.i(f"v_lshlrev_b32 v{Z+2}, 4, v{Z+2}")
        a.i(f"v_lshl_add_u32 v{self.VX}, v{Z}, 7, v{Z+2}")
        a.i(f"v_xor_b32 v{self.VX+1}, 64, v{self.VX}")
        a.i(f"v_add_u32 v{self.VX+2}, {H1}, v{self.VX}")
        a.i(f"v_add_u32 v{self.VX+3}, {H1}, v{self.VX+1}")
        a.i(f"v_lshlrev_b32 v{Z+4}, 1, v0")
        a.i(f"v_and_b32 v{Z+4}, 0x30, v{Z+4}")
        a.i(f"v_xor_b32 v{Z+4}, v{Z+4}, v1")
        a.i(f"s_mul_i32 {s(S_T0)}, {s(S_P)}, 3072")
        a.i(f"s_add_u32 {s(S_T0)}, {s(S_T0)}, {MISC}")
        a.i(f"s_lshl_b32 {s(S_T2)}, {s(DH)}, 3")
        a.i(f"s_add_u32 {s(S_T2)}, {s(S_T2)}, {s(S_T0)}")
        a.i(f"v_add_u32 v{self.WQK}, {s(S_T2)}, v{Z+4}")
        a.i(f"v_bfe_u32 v{Z+2}, v0, 1, 2")
        a.i(f"v_xor_b32 v{Z+2}, v{Z+2}, v{Z+1}")
        a.i(f"v_lshlrev_b32 v{Z+2}, 4, v{Z+2}")
        a.i(f"v_lshl_add_u32 v{Z+2}, v{Z}, 6, v{Z+2}")
        a.i(f"v_add_u32 v{self.WVV}, {s(S_T2)}, v{Z+2}")
        a.i(f"s_mul_i32 {s(S_T2)}, {s(DH)}, {self.SL}")
        a.i(f"s_add_u32 {s(S_T2)}, {s(S_T2)}, {s(S_T0)}")
        a.i(f"v_add_u32 v{self.RDA}, {s(S_T2)}, v{Z+4}")
        a.i(f"s_cmp_eq_u32 {s(DH)}, 0")
        a.i(f"s_cselect_b32 {s(S_T2)}, {3*self.SL}, 0")
        a.i(f"s_add_u32 {s(S_T2)}, {s(S_T2)}, {s(S_T0)}")
        a.i(f"v_add_u32 v{self.RDB}, {s(S_T2)}, v{Z+4}")
        a.i(f"s_sub_u32 {s(S_T2)}, {s(S_RHO)}, 1")
        a.i(f"s_max_i32 {s(S_T2)}, {s(S_T2)}, 0")
        a.i(f"v_mov_b32 v{Z+2}, {s(S_RHO)}")
        a.i(f"v_mov_b32 v{Z+3}, {s(S_T2)}")
        a.i(f"v_mov_b32 v{self.VCAP}, {16*FST()}")
        a.i(f"v_mov_b32 v{Z+5}, {2*FST()}")
        a.i("v_cmp_lt_u32 vcc, 15, v0")
        a.i(f"v_cndmask_b32 v{Z+2}, v{Z+2}, v{Z+3}, vcc")
        a.i(f"v_cndmask_b32 v{self.VCAP}, v{self.VCAP}, v{Z+5}, vcc")
        a.i(f"v_lshl_add_u32 v{Z+2}, v{Z+2}, 6, v{Z}")
        a.i(f"v_add_u32 v{Z+2}, {((WS_FL + 2 * FST()) >> OPT['fs']) + 256 + C_B}, v{Z+2}")
        a.i(f"v_lshlrev_b32 v{self.VFL}, {OPT['fs']}, v{Z+2}")
        only_poller(a, self.VFL, 32)
        a.i(f"v_mov_b32 v{self.VPD}, 0")
        a.i(f"v_mov_b32 v{self.VTG}, v{self.VFL}")
        a.i(f"s_mov_b32 {s(S_PO)}, {-13*FST()}")
        stats_lane(a, self.VST, Z + 2)
        a.i(f"v_and_b32 v{Z+2}, 16, v0")
        a.i(f"v_mul_u32_u24 v{Z+3}, {96*64}, v{Z+2}")
        a.i(f"v_add_u32 v{self.VST2}, v{Z+3}, v{self.VST}")
        a.i(f"v_lshl_add_u32 v{self.VST}, v{Z+2}, 6, v{self.VST}")
        a.i(f"s_sub_u32 {s(S_SO)}, 3, {s(S_RHO)}")
        a.i(f"s_lshl_b32 {s(S_SO)}, {s(S_SO)}, 15")
        a.i(f"s_add_u32 {s(S_SO)}, {s(S_SO)}, 0x{WS_STQ:x}")
        lm = lambda fn: sum(1 << l for l in range(64) if fn(l & 15, l >> 4))
        for reg, m in [(M_ODD, lm(lambda j, g: j & 1))] + \
                      [(M_OWN + 2 * h, lm(lambda j, g, h=h: 4 * g + 2 * h + (j & 1) <= j)) for h in range(2)]:
            a.i(f"s_mov_b32 {s(reg)}, 0x{m & 0xffffffff:x}")
            a.i(f"s_mov_b32 {s(reg+1)}, 0x{m >> 32:x}")
        a.i(f"s_mov_b32 {s(S_SC)}, {f32((32 ** -0.5) * math.log2(math.e))}")
        a.i(f"v_mov_b32 v{Z+2}, 0x0c0c0c0c")
        for h in range(2):
            ev = 0x0c0c0000 | ((2 * h + 1) << 8) | (2 * h)
            od = ((2 * h + 1) << 24) | ((2 * h) << 16) | 0x0c0c
            a.i(f"v_mov_b32 v{Z}, 0x{ev:x}")
            a.i(f"v_mov_b32 v{Z+1}, 0x{od:x}")
            a.i(f"v_cndmask_b32 v{Z}, v{Z}, v{Z+1}, {s(M_ODD,2)}")
            a.i(f"v_cndmask_b32 v{self.SEL+h}, v{Z}, v{Z+2}, {s(M_OWN+2*h,2)}")
            a.i(f"v_cndmask_b32 v{self.SEL+2+h}, v{Z+2}, v{Z}, {s(M_OWN+2*h,2)}")
        a.i(f"v_mov_b32 v{self.NEG}, 0xff800000")
        blk_base(a, S_OB, WS_O, 65536, -131072 + 1024)
        a.i(f"s_lshl_b32 {s(S_T0)}, {s(S_IDX)}, 1")
        a.i(f"s_add_u32 {s(S_T0)}, {s(S_T0)}, {s(S_P)}")
        a.i(f"s_lshl_b32 {s(S_T0)}, {s(S_T0)}, 11")
        a.i(f"s_add_u32 {s(S_OB)}, {s(S_OB)}, {s(S_T0)}")
        a.i(f"s_mul_i32 {s(S_T0)}, {s(DH)}, {65536-1024}")
        a.i(f"s_add_u32 {s(S_OB)}, {s(S_OB)}, {s(S_T0)}")
        a.i(f"s_cmp_eq_u32 {s(DH)}, 0")
        a.i(f"s_cselect_b32 {s(S_U)}, {65536-2048}, 0")
        a.i(f"s_cselect_b32 {s(M_VAL)}, -2, 0x{0xffffffff ^ (1 << 16):x}")
        a.i(f"s_cselect_b32 {s(M_FIRST)}, 0x10000, 0")
        a.i(f"s_cselect_b32 {s(M_FIRST+1)}, 0, 1")
        a.i(f"s_add_u32 {s(S_U)}, {s(S_U)}, 1024")
        a.i(f"s_mov_b32 {s(M_VAL+1)}, -1")
        a.i(f"s_cmp_eq_u32 {s(S_RHO)}, 0")
        a.i(f"s_cselect_b64 {s(M_FIRST,2)}, {s(M_FIRST,2)}, 0")
        a.i(f"s_mov_b32 {s(S_OO)}, 0x{WS_DUM:x}")
        a.i(f"s_mov_b64 {s(M_PREV,2)}, -1")

    def body(self, a, par, tail):
        ms, pre, post = self.gemm(par)
        q = 1 - par
        SL = self.SL
        old = lambda mb, nb: self.acc(q, mb, nb)
        ep = []
        for nb in range(3):
            for mb in range(2):
                d = old(mb, nb)
                ep += [f"v_mul_f32 v{d+r}, v{d+r}, v{self.RS+mb}" for r in range(4)]
                ep += [f"v_cvt_pk_bf16_f32 v{d}, v{d}, v{d+1}", f"v_cvt_pk_bf16_f32 v{d+1}, v{d+2}, v{d+3}",
                       f"ds_write_b64 v{self.WVV if nb == 2 else self.WQK}, {v(d,2)} offset:{(2*q+mb)*SL + nb*1024} #ex"]
        B0 = self.ACC + 24 * q
        QF, KP, KO, VF, SP, SO = B0, B0 + 4, B0 + 8, B0 + 12, B0 + 20, self.TT
        own = (self.RDA, SL) if q else (self.RDB, 0)
        prv = (self.RDA, 2 * q * SL)
        mx = OPT["q_x"]
        at = [f"ds_read_b128 {v(QF,4)}, v{own[0]} offset:{own[1]}",
              f"ds_read_b128 {v(KP,4)}, v{prv[0]} offset:{prv[1]+1024}",
              f"ds_read_b128 {v(KO,4)}, v{own[0]} offset:{own[1]+1024} #qk"]
        for db in range(2):
            at += [f"ds_read_b64_tr_b16 {v(VF+4*db,2)}, v{prv[0]} offset:{prv[1]+2048+8*db}",
                   f"ds_read_b64_tr_b16 {v(VF+4*db+2,2)}, v{own[0]} offset:{own[1]+2048+8*db} #vv"]
        at += [("gap", 4), "@wait lg=qk", mf(SP, v(KP, 4), v(QF, 4), "0"), mf(SO, v(KO, 4), v(QF, 4), "0")]
        M, T2, LG, P, O = QF, QF + 1, QF + 2, KP, None
        for X in (SP, SO):
            at += [f"v_cndmask_b32 v{X+2*h}, v{X+2*h}, v{X+2*h+1}, {s(M_ODD,2)}" for h in range(2)]
        at += [f"v_cndmask_b32 v{SP+2*h}, v{self.NEG}, v{SP+2*h}, {s(M_PREV,2)}" for h in range(2)]
        at += [f"v_cndmask_b32 v{LG+h}, v{SP+2*h}, v{SO+2*h}, {s(M_OWN+2*h,2)}" for h in range(2)]
        at += [f"v_max_f32 v{M}, v{LG}, v{LG+1}"]
        xl = lambda op: [x for sw in ("v_permlane16_swap_b32", "v_permlane32_swap_b32")
                         for x in (f"v_mov_b32 v{T2}, v{M}", f"{sw} v{M}, v{T2}", f"{op} v{M}, v{M}, v{T2}")]
        at += xl("v_max_f32")
        at += [f"v_mul_f32 v{M}, {s(S_SC)}, v{M}"]
        at += [f"v_fma_f32 v{LG+h}, v{LG+h}, {s(S_SC)}, -v{M}" for h in range(2)]
        at += [f"v_exp_f32 v{LG+h}, v{LG+h}" for h in range(2)]
        at += [f"v_add_f32 v{M}, v{LG}, v{LG+1}"] + xl("v_add_f32") + [f"v_rcp_f32 v{M}, v{M}"]
        at += [f"v_mul_f32 v{LG+h}, v{LG+h}, v{M}" for h in range(2)]
        at += [f"v_cvt_pk_bf16_f32 v{T2}, v{LG}, v{LG+1}"]
        at += [f"v_perm_b32 v{P+e}, v{T2}, v{T2}, v{self.SEL+e}" for e in range(4)]
        if tail:
            at += ["@wait lg=vv"]
        at += [mf(SP, v(VF, 4), v(P, 4), "0"), mf(SO, v(VF + 4, 4), v(P, 4), "0")]
        at += [f"v_cvt_pk_bf16_f32 v{KO}, v{SP}, v{SP+1}", f"v_cvt_pk_bf16_f32 v{KO+1}, v{SP+2}, v{SP+3}",
               f"v_cvt_pk_bf16_f32 v{KO+2}, v{SO}, v{SO+1}", f"v_cvt_pk_bf16_f32 v{KO+3}, v{SO+2}, v{SO+3}",
               f"buffer_store_dwordx4 {v(KO,4)}, v1, {s(SRD_WS,4)}, {s(S_OO)} offen sc1 #o", ("mark", "o")]
        if tail:
            sched(a, [None] * len(ms), {}, {}, [(0, ep + ["@wait lg=ex|s_barrier"] + at + ["@wait vm=o|s_barrier"] + signal())], "q tail")
            return
        T = B0 + 12
        st_i, st_c = stats_items(a, T + 10, s(S_SO), [T, T + 2, T + 4, T + 6], T + 8, T + 9, self.NM, self.RS)
        sv = [f"s_cmp_eq_u32 {s(S_N)}, 16|s_cselect_b64 {s(M_SB,2)}, -1, 0|s_cselect_b32 {s(S_T1)}, {95*1024}, 0",
              f"v_cndmask_b32 v{T+10}, v{self.VST}, v{self.VST2}, {s(M_SB,2)}"]
        sn = [f"s_add_u32 {s(S_SO)}, {s(S_SO)}, 2048", f"s_add_u32 {s(S_SO)}, {s(S_SO)}, {s(S_T1)}"]
        inj = [(0, [("after", "st")] + [f"v_fmac_f32 v{self.acc(par, mb, nb)+r}, v{self.NM+mb}, v{self.CS+4*nb+r}" for r in range(4)]
                + [("mark", "inj")]) for nb in range(3) for mb in range(2)]
        pl_i, pl_c = poll(a, self.VTG, self.VPD, "pl")
        tg = [f"v_med3_i32 v{self.VTG}, {s(S_PO)}, 0, v{self.VCAP}", f"v_add_u32 v{self.VTG}, v{self.VTG}, v{self.VFL}",
              f"s_add_u32 {s(S_PO)}, {s(S_PO)}, {FST()}"]
        on = [f"s_cmp_eq_u32 {s(S_N)}, 17|s_cselect_b32 {s(S_E2)}, {s(S_U)}, 0x10000", f"s_add_u32 {s(S_OB)}, {s(S_OB)}, {s(S_E2)}",
              f"s_bitcmp1_b64 {s(M_VAL,2)}, {s(S_N)}|s_cselect_b32 {s(S_OO)}, {s(S_OB)}, 0x{WS_DUM:x}",
              f"s_bitcmp1_b64 {s(M_FIRST,2)}, {s(S_N)}|s_cselect_b64 {s(M_PREV,2)}, 0, -1"]
        pre[180] = [("chk", "S")] + pre[180]
        pre[84] = [("chk", "ex")] + pre[84]
        mk = self.marks = sched(a, ms, pre, post, [
            (0, [("after", "ex")] + self.xdma(q) + [("mark", "dma")] + tg + [pl_i]),
            (0, ep + [mx - 2, "@wait vm=pl", pl_c, mx, "@wait lg=ex|s_barrier", ("mark", "ex")] + at + sv + st_i +
             [("after", "g1"), OPT["q_sig"], "@wait vm=st,g1|s_barrier", ("mark", "S")] + signal() + st_c[1:] + [("mark", "st")] + sn),
            (0, [("after", "o")] + on)] + inj + [(0, [("after", "dma")] + self.xnext())], "q")
        assert mk["o"] - mk["ex"] > 30


class O(Role):
    name, NB, NKS, GS = "o", 2, 32, 2
    VX, VR, VFL, SW, SR, VL4 = 1, 3, 4, 6, 7, 8
    ACC, XR, SEL, RES, VPD, T = 12, 44, 108, 128, 136, 140
    GR = [4, 4, 4, 4]

    def acc(self, par, mb, nb):
        return self.ACC + 16 * par + 4 * (2 * mb + nb)

    def gen(self, a):
        def frag(nb):
            return [f"s_lshr_b32 {s(S_T0)}, {s(S_WAVE)}, 1", f"s_lshl_b32 {s(S_T0)}, {s(S_T0)}, 13",
                    f"s_and_b32 {s(S_T1)}, {s(S_WAVE)}, 1", f"s_lshl_b32 {s(S_T1)}, {s(S_T1)}, 6",
                    f"s_add_u32 {s(S_T0)}, {s(S_T0)}, {s(S_T1)}", f"s_add_u32 {s(S_T0)}, {s(S_T0)}, {8*nb}"]
        a.i(f"s_lshl_b32 {s(S_KW)}, {s(S_IDX)}, 8")
        self.load_w(a, KA_WO, D_ * D_ * 2, D_ * 2, 2, 128, frag, 0, 6, self.XR, first=lambda: self.consts(a))
        stamp_at(a, 1, 63)
        all_arrived(a, self.ACC)
        self.first_block(a, 2, 31 * 65536)
        for x in self.resid(0):
            a.emit(x)
        self.loop(a, 32)

    def consts(self, a):
        Z = self.ACC
        a.i(f"v_add_u32 v2, {H1}, v1")
        sel_regs(a, self.SEL, Z)
        self.flag_addr(a, self.VFL, C_Q, 16)
        a.i(f"s_mov_b32 {s(S_SC)}, 0x{ONES:x}")
        a.i(f"s_lshl_b32 {s(S_LW)}, {s(S_WAVE)}, 12")
        blk_base(a, S_XO, WS_O, 65536)
        a.i(f"s_add_u32 {s(S_XO)}, {s(S_XO)}, {s(S_LW)}")
        a.i(f"s_lshl_b32 {s(S_T1)}, {s(S_IDX)}, 2")
        a.i(f"s_add_u32 {s(S_T1)}, {s(S_T1)}, {s(S_WAVE)}")
        blk_base(a, S_OB, WS_X1, 65536, -65536)
        a.i(f"s_lshl_b32 {s(S_T0)}, {s(S_T1)}, 11")
        a.i(f"s_add_u32 {s(S_OB)}, {s(S_OB)}, {s(S_T0)}")
        a.i(f"v_and_b32 v{Z}, 15, v0")
        a.i(f"v_and_b32 v{Z+1}, 0x30, v0")
        a.i(f"v_lshl_add_u32 v{self.VR}, v{Z}, 11, v{Z+1}")
        a.i(f"s_lshl_b32 {s(S_T0)}, {s(S_T1)}, 6")
        a.i(f"v_add_u32 v{self.VR}, {s(S_T0)}, v{self.VR}")
        a.i(f"s_lshl_b32 {s(S_RO)}, {s(S_RHO)}, 20")
        a.i(f"s_add_u32 {s(S_RO)}, {s(S_RO)}, {480*2048}")
        a.i(f"s_add_u32 {s(S_B0)}, {s(ptr(KA_WS))}, 0x{WS_X2:x}")
        a.i(f"s_addc_u32 {s(S_B1)}, {s(ptr(KA_WS)+1)}, 0")
        a.srd(SRD_X, ptr(KA_X), 0, XBYTES)
        a.i(f"v_bfe_u32 v{Z+1}, v0, 4, 1")
        a.i(f"v_lshl_add_u32 v{Z}, v{Z}, 1, v{Z+1}")
        a.i(f"s_lshl_b32 {s(S_T0)}, {s(S_WAVE)}, 2")
        a.i(f"s_add_u32 {s(S_T0)}, {s(S_T0)}, {MISC}")
        a.i(f"v_lshl_add_u32 v{self.SW}, v{Z}, 4, {s(S_T0)}")
        a.i(f"v_add_u32 v{self.SR}, {MISC}, v1")
        a.i(f"v_and_b32 v{Z}, 31, v0")
        a.i(f"v_lshrrev_b32 v{Z+1}, 5, v0")
        a.i(f"v_lshlrev_b32 v{Z}, 2, v{Z}")
        a.i(f"v_lshl_add_u32 v{self.VL4}, v{Z+1}, 10, v{Z}")
        blk_base(a, S_SO, WS_STA, 2048, -2048)
        a.i(f"s_lshl_b32 {s(S_T0)}, {s(S_IDX)}, 7")
        a.i(f"s_add_u32 {s(S_SO)}, {s(S_SO)}, {s(S_T0)}")
        a.i(f"s_cmp_eq_u32 {s(S_WAVE)}, 2")
        a.i(f"s_cselect_b32 {s(S_SO)}, {s(S_SO)}, 0x{WS_DUM:x}")
        a.i(f"s_mov_b32 {s(S_N)}, -1")

    def resid(self, par):
        return [f"s_add_u32 {s(S_E0)}, {s(S_N)}, 1", f"s_min_u32 {s(S_E0)}, {s(S_E0)}, 31",
                f"s_cmp_ge_u32 {s(S_E0)}, 16|s_cselect_b32 {s(SRD_X)}, {s(S_B0)}, {s(ptr(KA_X))}|"
                f"s_cselect_b32 {s(SRD_X+1)}, {s(S_B1)}, {s(ptr(KA_X)+1)}",
                f"s_and_b32 {s(S_E0)}, {s(S_E0)}, 15", f"s_lshl_b32 {s(S_E0)}, {s(S_E0)}, 16",
                f"s_sub_u32 {s(S_E0)}, {s(S_RO)}, {s(S_E0)}", f"s_add_u32 {s(S_E1)}, {s(S_E0)}, {16*2048}",
                f"buffer_load_dwordx4 {v(self.RES,4)}, v{self.VR}, {s(SRD_X,4)}, {s(S_E1)} offen sc1",
                f"buffer_load_dwordx4 {v(self.RES+4,4)}, v{self.VR}, {s(SRD_X,4)}, {s(S_E0)} offen sc1 #rs"]

    def body(self, a, par, tail):
        ms, pre, post = self.gemm(par, cinit=lambda mb, nb: v(self.acc(par, mb, nb), 4))
        q = 1 - par
        T = self.T
        ep = [f"s_cmp_eq_u32 {s(S_N)}, 0|s_cselect_b32 {s(S_OO)}, 0x{WS_DUM:x}, {s(S_OB)}|"
              f"s_cselect_b32 {s(S_E2)}, 0x{WS_DUM:x}, {s(S_SO)}"]
        for mb in range(2):
            d = self.acc(q, mb, 0)
            ep += [f"v_cvt_pk_bf16_f32 v{d+e}, v{d+2*e}, v{d+2*e+1}" for e in range(4)]
            ep += [f"buffer_store_dwordx4 {v(d,4)}, v1, {s(SRD_WS,4)}, {s(S_OO)} offen offset:{1024*mb} sc1 #o"]
        for mb in range(2):
            ep += part_stats(self.acc(q, mb, 0), T + 4 * mb)
            ep += [f"ds_write_b32 v{self.SW}, v{T+4*mb} offset:{1024*q+512*mb} #ex"]
        ep += [("mark", "ex")]
        ep.insert(11, ("mark", "o"))
        mx = 56
        ep += [mx, f"ds_read_b128 {v(T,4)}, v{self.SR} offset:{1024*q} #sr", mx + 4, "@wait lg=sr",
               f"v_add_f32 v{T}, v{T}, v{T+1}", f"v_add_f32 v{T+2}, v{T+2}, v{T+3}", f"v_add_f32 v{T}, v{T}, v{T+2}",
               f"v_min_u32 v{T}, -2, v{T}",
               f"buffer_store_dword v{T}, v{self.VL4}, {s(SRD_WS,4)}, {s(S_E2)} offen sc1",
               f"s_add_u32 {s(S_OB)}, {s(S_OB)}, 65536", f"s_add_u32 {s(S_SO)}, {s(S_SO)}, 2048"]
        if tail:
            pre = {mx: [("chk", "ex"), "@wait lg=ex", "s_barrier"]}
            sched(a, [None] * len(ms), pre, {}, [(0, ep + ["@wait vm=o|s_barrier"] + signal())], "o tail")
            return
        p, r, bs = self.feed(a, par, pre, [0, 8, 16, 24], 65536, "o", lg={2: "ex"}, early=True)
        assert bs[2] == mx
        init = [mf(self.acc(q, mb, nb), v(self.SEL + 4 * nb, 4), v(self.RES + 4 * mb, 4), "0") for mb in range(2) for nb in range(2)]
        self.marks = sched(a, ms, pre, post, [(0, ep[:12]), (0, p), (0, r), (0, [("after", "o")] + ep[12:]),
                                              (12, self.resid(par) + [110, "@wait vm=rs"] + init)], "o")

    def first_reads(self, a, par):
        for mb in range(2):
            for nb in range(2):
                a.i(mf(self.acc(0, mb, nb), v(self.SEL + 4 * nb, 4), v(self.RES + 4 * mb, 4), "0"))
        super().first_reads(a, par)


class A(Role):
    name, NB, NKS, GS = "a", 3, 32, 2
    VX, EW, ER, VFL, VST, VPD = 1, 3, 4, 5, 6, 7
    ACC, XR, CS, BI, NM, SD, RS, TT = 8, 56, 88, 100, 112, 114, 116, 118
    GR = [4, 4, 4, 4]

    def acc(self, par, mb, nb):
        return self.ACC + 24 * par + (4 * (2 * mb + nb) if nb < 2 else 16 + 4 * mb)

    def gen(self, a):
        a.i(f"s_mov_b32 {s(S_SC)}, 0x{ONES:x}")
        helper_start(a, 0)

        def frag(nb):
            hi, lo = (13, 6) if nb < 2 else (6, 3)
            return [f"s_lshr_b32 {s(S_T0)}, {s(S_WAVE)}, 1", f"s_lshl_b32 {s(S_T0)}, {s(S_T0)}, {hi}",
                    f"s_and_b32 {s(S_T1)}, {s(S_WAVE)}, 1", f"s_lshl_b32 {s(S_T1)}, {s(S_T1)}, {lo}",
                    f"s_add_u32 {s(S_T0)}, {s(S_T0)}, {s(S_T1)}",
                    f"s_add_u32 {s(S_T0)}, {s(S_T0)}, {8*nb if nb < 2 else 16384}"]
        a.i(f"s_mul_i32 {s(S_P)}, {s(S_IDX)}, 6")
        a.i(f"s_min_u32 {s(S_P)}, {s(S_P)}, 106")
        a.i(f"s_lshl_b32 {s(S_KW)}, {s(S_P)}, 6")
        self.load_w(a, KA_W1, D_ * F_ * 2, F_ * 2, 3, 128, frag, 0, 6, self.XR, CS=self.CS, first=lambda: self.consts(a))
        Z = self.ACC
        a.i(f"s_mov_b32 {s(S_T0)}, 0xffff0000")
        for j in range(6):
            a.i(f"v_lshlrev_b32 v{self.BI+2*j}, 16, v{Z+8+j}")
            a.i(f"v_and_b32 v{self.BI+2*j+1}, {s(S_T0)}, v{Z+8+j}")
        stamp_at(a, 1, 63)
        all_arrived(a, self.XR)
        self.first_block(a, 1, 31 * 65536)
        self.loop(a, 32)

    def consts(self, a):
        Z = self.ACC
        a.i(f"v_add_u32 v2, {H1}, v1")
        self.flag_addr(a, self.VFL, C_O, 8)
        a.i(f"s_lshl_b32 {s(S_LW)}, {s(S_WAVE)}, 12")
        blk_base(a, S_XO, WS_X1, 65536)
        a.i(f"s_add_u32 {s(S_XO)}, {s(S_XO)}, {s(S_LW)}")
        blk_base(a, S_OB, WS_H, HBLK, -HBLK)
        a.i(f"s_add_u32 {s(S_T0)}, {s(S_P)}, {s(S_WAVE)}")
        a.i(f"s_lshl_b32 {s(S_T0)}, {s(S_T0)}, 11")
        a.i(f"s_add_u32 {s(S_OB)}, {s(S_OB)}, {s(S_T0)}")
        a.i(f"s_lshl_b32 {s(S_T0)}, {s(S_WAVE)}, 10")
        a.i(f"s_sub_u32 {s(S_U)}, 8192, {s(S_T0)}")
        a.i(f"s_lshl_b32 {s(S_T1)}, {s(S_IDX)}, 1")
        a.i(f"s_lshr_b32 {s(S_T2)}, {s(S_WAVE)}, 1")
        a.i(f"s_add_u32 {s(S_T1)}, {s(S_T1)}, {s(S_T2)}")
        a.i(f"s_cmp_eq_u32 {s(S_T1)}, 36")
        a.i(f"s_cselect_b32 {s(S_B0)}, 0x{WS_DUM:x}, 0")
        a.i(f"s_and_b32 {s(S_T1)}, {s(S_WAVE)}, 1")
        a.i(f"s_lshl_b32 {s(S_T1)}, {s(S_T1)}, 3")
        a.i(f"s_and_b32 {s(S_T2)}, {s(S_WAVE)}, 2")
        a.i(f"s_lshl_b32 {s(S_T2)}, {s(S_T2)}, 10")
        a.i(f"s_add_u32 {s(S_T1)}, {s(S_T1)}, {s(S_T2)}")
        a.i(f"s_add_u32 {s(S_T1)}, {s(S_T1)}, {MISC}")
        a.i(f"v_add_u32 v{self.EW}, {s(S_T1)}, v1")
        a.i(f"s_add_u32 {s(S_T0)}, {s(S_T0)}, {MISC}")
        a.i(f"v_add_u32 v{self.ER}, {s(S_T0)}, v1")
        stats_lane(a, self.VST, Z)
        a.i(f"v_and_b32 v{Z}, 16, v0")
        a.i(f"v_lshl_add_u32 v{self.VST}, v{Z}, 6, v{self.VST}")
        blk_base(a, S_SO, WS_STA, 2048)
        a.srd(SRD_X, ptr(KA_B1), 0, F_ * 2)
        a.i(f"v_and_b32 v{Z}, 0x30, v0")
        a.i(f"s_add_u32 {s(S_T0)}, {s(S_P)}, {s(S_WAVE)}")
        a.i(f"s_lshl_b32 {s(S_T0)}, {s(S_T0)}, 6")
        a.emit(f"buffer_load_dwordx4 {v(Z+8,4)}, v{Z}, {s(SRD_X,4)}, {s(S_T0)} offen")
        a.i(f"s_lshr_b32 {s(S_T0)}, {s(S_WAVE)}, 1")
        a.i(f"s_add_u32 {s(S_T0)}, {s(S_T0)}, {s(S_P)}")
        a.i(f"s_lshl_b32 {s(S_T0)}, {s(S_T0)}, 6")
        a.i(f"s_and_b32 {s(S_T1)}, {s(S_WAVE)}, 1")
        a.i(f"s_lshl_b32 {s(S_T1)}, {s(S_T1)}, 3")
        a.i(f"s_add_u32 {s(S_T0)}, {s(S_T0)}, {s(S_T1)}")
        a.emit(f"buffer_load_dwordx2 {v(Z+12,2)}, v{Z}, {s(SRD_X,4)}, {s(S_T0)} offen offset:256")

    def body(self, a, par, tail):
        ms, pre, post = self.gemm(par)
        q = 1 - par

        def act(mb, nb, dst):
            d = self.acc(q, mb, nb)
            return [f"v_mul_f32 v{d+r}, v{d+r}, v{self.RS+mb}" for r in range(4)] + \
                   [f"v_max_f32 v{d+r}, 0, v{d+r}" for r in range(4)] + \
                   [f"v_mul_f32 v{d+r}, v{d+r}, v{d+r}" for r in range(4)] + \
                   [f"v_cvt_pk_bf16_f32 v{dst}, v{d}, v{d+1}", f"v_cvt_pk_bf16_f32 v{dst+1}, v{d+2}, v{d+3}"]
        ep = []
        for mb in range(2):
            d = self.acc(q, mb, 2)
            ep += act(mb, 2, d) + [f"ds_write_b64 v{self.EW}, {v(d,2)} offset:{4096*q+1024*mb} #ex"]
        ep += [("mark", "ex")]
        e2 = []
        for mb in range(2):
            d = self.acc(q, mb, 0)
            e2 += act(mb, 0, d) + act(mb, 1, d + 2)
            e2 += [f"buffer_store_dwordx4 {v(d,4)}, v1, {s(SRD_WS,4)}, {s(S_OO)} offen offset:{1024*mb} sc1 #o"]
        e2 += [("mark", "o")]
        mx = 36
        d = self.acc(q, 0, 2)
        e3 = [f"s_cmp_eq_u32 {s(S_N)}, 0|s_cselect_b32 {s(S_OO)}, 0x{WS_DUM:x}, {s(S_OB)}",
              f"s_add_u32 {s(S_E2)}, {s(S_OO)}, {s(S_U)}", f"s_max_u32 {s(S_OO)}, {s(S_OO)}, {s(S_B0)}",
              f"s_add_u32 {s(S_OB)}, {s(S_OB)}, {HBLK}",
              mx, f"ds_read_b128 {v(d,4)}, v{self.ER} offset:{4096*q} #er", mx + 5, "@wait lg=er",
              f"buffer_store_dwordx4 {v(d,4)}, v1, {s(SRD_WS,4)}, {s(S_E2)} offen sc1 #o3"]
        if tail:
            pre = {mx: [("chk", "ex"), "@wait lg=ex", "s_barrier"]}
            sched(a, [None] * len(ms), pre, {}, [(0, e3), (0, ep + e2 + [mx + 6, "@wait vm=o,o3|s_barrier"] + signal())], "a tail")
            return
        p, r, bs = self.feed(a, par, pre, [0, 8, 16, 24], 65536, "o,o3", lg={1: "ex"})
        assert bs[1] == mx
        T = self.acc(q, 1, 2)
        st_i, st_c = stats_items(a, self.VST, s(S_SO), [T, T + 2, self.TT, self.TT + 2], 122, 123, self.NM, self.RS, self.SD)
        inj = [(0, [("after", "st")] + [f"v_fmac_f32 v{self.acc(par, mb, nb)+r}, v{self.NM+mb}, v{self.CS+4*nb+r}" for r in range(4)]
                + [f"v_fmac_f32 v{self.acc(par, mb, nb)+r}, v{self.SD+mb}, v{self.BI+4*nb+r}" for r in range(4)]
                + [("mark", "inj")]) for nb in range(3) for mb in range(2)]
        self.marks = sched(a, ms, pre, post, [
            (0, e3), (0, p), (0, r),
            (0, ep + st_i + e2 + [OPT["a_st"]] + st_c + [f"s_add_u32 {s(S_SO)}, {s(S_SO)}, 2048", ("mark", "st")])] + inj, "a")


class B(Role):
    NB, GS = 4, 1
    VX, VFL, VXF, VO, SW, SR, VL4, VXD = 2, 6, 8, 9, 10, 11, 12, 13
    ACC, XR, VPD, T = 16, 80, 96, 100
    SEL, BI, KEPT, RES, PF = 104, 112, 128, 136, 140

    def __init__(self, fin):
        self.fin = fin
        self.name = "bf" if fin else "bs"
        self.NKS = 22 if fin else 24
        self.WV0 = 160 if fin else 128
        self.GR = [3, 3, 3, 2] if fin else [3, 3, 3, 3]
        self.late = 0 if fin else 16

    def acc(self, par, mb, nb):
        return self.ACC + 32 * par + 8 * (mb + 2 * (nb >> 1)) + 4 * (nb & 1)

    def xread(self, dst, par, ks, mb):
        return f"ds_read_b128 {v(dst,4)}, v{self.VX+2*par+mb} offset:{2*ks*1024}"

    def gen(self, a):
        a.i(f"s_mov_b32 {s(S_SC)}, 0x{ONES:x}")
        helper_start(a, 1)
        a.i(f"s_lshr_b32 {s(S_P)}, {s(S_IDX)}, 2")
        a.i(f"s_and_b32 {s(S_U)}, {s(S_IDX)}, 3")

        def frag(nb):
            return [f"s_lshl_b32 {s(S_T0)}, {s(S_WAVE)}, 13", f"s_and_b32 {s(S_T1)}, {s(S_P)}, 2",
                    f"s_lshl_b32 {s(S_T1)}, {s(S_T1)}, 5", f"s_xor_b32 {s(S_T1)}, {s(S_T1)}, {(nb >> 1) * 64 + (nb & 1) * 8}",
                    f"s_add_u32 {s(S_T0)}, {s(S_T0)}, {s(S_T1)}"]
        a.i(f"s_mul_i32 {s(S_KW)}, {s(S_P)}, {22*32*2048}")
        a.i(f"s_lshl_b32 {s(S_T0)}, {s(S_U)}, 9")
        a.i(f"s_add_u32 {s(S_KW)}, {s(S_KW)}, {s(S_T0)}")
        self.load_w(a, KA_W2, F_ * D_ * 2, D_ * 2, 4, 128, frag, 0, 5, self.ACC + 32, first=lambda: self.consts(a))
        if self.fin:
            Z = self.ACC
            a.i(f"s_mov_b32 {s(S_T0)}, 0xffff0000")
            for j in range(4):
                a.i(f"v_lshlrev_b32 v{self.BI+2*j}, 16, v{Z+8+j}")
                a.i(f"v_and_b32 v{self.BI+2*j+1}, {s(S_T0)}, v{Z+8+j}")
        stamp_at(a, 1, 63)
        all_arrived(a, self.XR)
        self.first_block(a, 1, 31 * HBLK)
        self.loop(a, 32)

    def consts(self, a):
        Z = self.ACC
        a.i(f"s_and_b32 {s(S_T2)}, {s(S_P)}, 1")
        a.i(f"s_lshl_b32 {s(S_T0)}, {s(S_T2)}, 10")
        a.i(f"v_add_u32 v{self.VX}, {s(S_T0)}, v1")
        a.i(f"v_xor_b32 v{self.VX+1}, 1024, v{self.VX}")
        a.i(f"v_add_u32 v{self.VX+2}, {H1}, v{self.VX}")
        a.i(f"v_add_u32 v{self.VX+3}, {H1}, v{self.VX+1}")
        a.i(f"s_mul_i32 {s(S_T1)}, {s(S_P)}, 11*43")
        a.i(f"s_lshr_b32 {s(S_T1)}, {s(S_T1)}, 7")
        a.i(f"s_add_u32 {s(S_T1)}, {s(S_T1)}, {C_A}")
        self.flag_addr(a, self.VFL, s(S_T1), 5)
        a.i(f"s_mul_i32 {s(S_LW)}, {s(S_WAVE)}, 3072")
        a.i(f"s_lshl_b32 {s(S_B0)}, {s(S_WAVE)}, 11")
        a.i(f"s_sub_u32 {s(S_B1)}, {s(S_B0)}, {s(S_LW)}")
        blk_base(a, S_XO, WS_H, HBLK)
        a.i(f"s_mul_i32 {s(S_T0)}, {s(S_P)}, {22*2048}")
        a.i(f"s_add_u32 {s(S_XO)}, {s(S_XO)}, {s(S_T0)}")
        a.i(f"s_add_u32 {s(S_XO)}, {s(S_XO)}, {s(S_LW)}")
        blk_base(a, S_OB, WS_XB, 262144, -262144)
        a.i(f"s_lshl_b32 {s(S_T0)}, {s(S_U)}, 16")
        a.i(f"s_add_u32 {s(S_OB)}, {s(S_OB)}, {s(S_T0)}")
        a.i(f"s_lshl_b32 {s(S_T0)}, {s(S_WAVE)}, 12")
        a.i(f"s_add_u32 {s(S_OB)}, {s(S_OB)}, {s(S_T0)}")
        a.i(f"s_and_b32 {s(S_T0)}, {s(S_P)}, 3")
        a.i(f"s_lshl_b32 {s(S_T0)}, {s(S_T0)}, 14")
        a.i(f"s_add_u32 {s(S_OB)}, {s(S_OB)}, {s(S_T0)}")
        if not self.fin:
            return
        sel_regs(a, self.SEL, Z)
        a.i(f"s_add_u32 {s(S_T1)}, {s(S_U)}, {C_B}")
        self.flag_addr(a, self.VXF, s(S_T1), 5, 2)
        a.i(f"s_lshl_b32 {s(S_T1)}, {s(S_U)}, 2")
        a.i(f"s_add_u32 {s(S_T1)}, {s(S_T1)}, {s(S_WAVE)}")
        a.i(f"s_lshl_b32 {s(S_T1)}, {s(S_T1)}, 1")
        a.i(f"s_lshr_b32 {s(S_T0)}, {s(S_P)}, 1")
        a.i(f"s_add_u32 {s(S_T1)}, {s(S_T1)}, {s(S_T0)}")
        blk_base(a, S_XI, WS_X1, 65536, -65536)
        a.i(f"s_lshl_b32 {s(S_T0)}, {s(S_T1)}, 11")
        a.i(f"s_add_u32 {s(S_XI)}, {s(S_XI)}, {s(S_T0)}")
        a.i(f"s_lshl_b32 {s(S_T0)}, {s(S_T2)}, 10")
        a.i(f"s_add_u32 {s(S_XI)}, {s(S_XI)}, {s(S_T0)}")
        a.i(f"v_and_b32 v{Z}, 15, v0")
        a.i(f"v_and_b32 v{Z+1}, 0x30, v0")
        a.i(f"s_lshl_b32 {s(S_T1)}, {s(S_T1)}, 6")
        a.srd(SRD_X, ptr(KA_B2), 0, D_ * 2)
        a.emit(f"buffer_load_dwordx4 {v(Z+8,4)}, v{Z+1}, {s(SRD_X,4)}, {s(S_T1)} offen")
        a.i(f"v_lshl_add_u32 v{self.VO}, v{Z}, 11, v{Z+1}")
        a.i(f"v_add_u32 v{self.VO}, {s(S_T1)}, v{self.VO}")
        a.i(f"s_lshl_b32 {s(S_RO)}, {s(S_RHO)}, 5")
        a.i(f"s_add_u32 {s(S_RO)}, {s(S_RO)}, 31")
        a.i(f"s_sub_u32 {s(S_RO)}, {s(S_RO)}, {s(S_T2)}")
        a.i(f"v_bfe_u32 v{Z+1}, v0, 4, 1")
        a.i(f"v_lshl_add_u32 v{Z}, v{Z}, 1, v{Z+1}")
        a.i(f"s_lshl_b32 {s(S_T0)}, {s(S_WAVE)}, 2")
        a.i(f"s_add_u32 {s(S_T0)}, {s(S_T0)}, {MISC}")
        a.i(f"v_lshl_add_u32 v{self.SW}, v{Z}, 4, {s(S_T0)}")
        a.i(f"v_and_b32 v{Z}, 31, v0")
        a.i(f"v_lshrrev_b32 v{self.VL4}, 5, v0")
        a.i(f"v_lshlrev_b32 v{self.VL4}, 30, v{self.VL4}")
        a.i(f"v_lshl_add_u32 v{self.VL4}, v{Z}, 2, v{self.VL4}")
        a.i(f"v_lshlrev_b32 v{Z}, 4, v{Z}")
        a.i(f"v_add_u32 v{self.SR}, {MISC}, v{Z}")
        a.i(f"s_lshl_b32 {s(S_T0)}, {s(S_U)}, 1")
        a.i(f"s_lshr_b32 {s(S_T1)}, {s(S_P)}, 1")
        a.i(f"s_add_u32 {s(S_T0)}, {s(S_T0)}, {s(S_T1)}")
        a.i(f"s_lshl_b32 {s(S_T0)}, {s(S_T0)}, 7")
        a.i(f"s_add_u32 {s(S_ST)}, {s(S_T0)}, 0x{WS_STQ + 131072 + 127 * 1024:x}")
        a.i(f"s_cmp_eq_u32 {s(S_WAVE)}, 2")
        a.i(f"s_cselect_b32 {s(S_ST)}, {s(S_ST)}, 0x{WS_DUM + MB1:x}")

    def stage2(self, q, lag):
        K, T = self.KEPT, self.T
        ws = ptr(KA_WS)
        sc = [f"s_sub_u32 {s(S_E0)}, {s(S_N)}, {lag}",
              f"s_cmp_lt_u32 {s(S_E0)}, 16|s_cselect_b32 {s(S_E1)}, 0x{WS_X2:x}, {s(S_TG2)}",
              f"s_add_u32 {s(SRD_OUT)}, {s(ws)}, {s(S_E1)}|s_addc_u32 {s(SRD_OUT+1)}, {s(ws+1)}, 0",
              f"s_cmp_ge_i32 {s(S_E0)}, 16|s_cselect_b32 {s(SRD_OUT)}, {s(ptr(KA_OUT))}, {s(SRD_OUT)}|"
              f"s_cselect_b32 {s(SRD_OUT+1)}, {s(ptr(KA_OUT)+1)}, {s(SRD_OUT+1)}",
              f"s_and_b32 {s(S_E1)}, {s(S_E0)}, 15", f"s_lshl_b32 {s(S_E1)}, {s(S_E1)}, 1",
              f"s_sub_u32 {s(S_E1)}, {s(S_RO)}, {s(S_E1)}",
              f"s_lshl_b32 {s(S_SO)}, {s(S_E1)}, 10", f"s_sub_u32 {s(S_SO)}, {s(S_ST)}, {s(S_SO)}",
              f"s_cmp_lt_u32 {s(S_E0)}, 16|s_cselect_b32 {s(S_SO)}, {s(S_SO)}, {s(S_TG2)}",
              f"s_lshl_b32 {s(S_E1)}, {s(S_E1)}, 15"]
        o = ["@wait vm=pf"]
        for j in range(4):
            for b in range(2):
                o.append(mf(K + 4 * b, v(self.SEL + 4 * b, 4), v(self.PF + 4 * j, 4), v(K + 4 * b, 4)))
        F = self.PF
        o += [f"v_cvt_pk_bf16_f32 v{F+e}, v{K+2*e}, v{K+2*e+1}" for e in range(4)]
        o += [f"buffer_store_dwordx4 {v(F,4)}, v{self.VO}, {s(SRD_OUT,4)}, {s(S_E1)} offen sc1 #f", ("mark", "f")]
        st = part_stats(F, T) + [f"ds_write_b32 v{self.SW}, v{T} offset:{512*q} #ex", ("mark", "ex")]
        P = self.PF + 4
        st2 = [f"ds_read_b128 {v(P,4)}, v{self.SR} offset:{512*q} #sr", "@wait lg=sr",
               f"v_add_f32 v{P}, v{P}, v{P+1}", f"v_add_f32 v{P+2}, v{P+2}, v{P+3}", f"v_add_f32 v{P}, v{P}, v{P+2}",
               f"v_min_u32 v{P}, -2, v{P}",
               f"buffer_store_dword v{P}, v{self.VL4}, {s(SRD_WS,4)}, {s(S_SO)} offen sc1"]
        return sc, o, st, st2

    def body(self, a, par, tail):
        fin = self.fin
        ms, pre, post = self.gemm(par, cinit=lambda mb, nb: v(self.BI + 4 * nb, 4) if (fin and mb == 0 and nb < 2) else "0")
        q = 1 - par
        s1 = [f"s_cmp_eq_u32 {s(S_N)}, 0|s_cselect_b32 {s(S_OO)}, 0x{WS_DUM:x}, {s(S_OB)}"]
        for u in ((1, 2, 3) if fin else (0, 1, 2, 3)):
            d = self.ACC + 32 * q + 8 * u
            s1 += [f"s_xor_b32 {s(S_E2)}, {s(S_OO)}, {u << 14}"]
            s1 += [f"v_cvt_pk_bf16_f32 v{d+e}, v{d+2*e}, v{d+2*e+1}" for e in range(4)]
            s1 += [f"buffer_store_dwordx4 {v(d,4)}, v1, {s(SRD_WS,4)}, {s(S_E2)} offen offset:{1024*(u-1) if fin else 3072} sc1 #o"]
        s1 += [f"s_add_u32 {s(S_OB)}, {s(S_OB)}, 262144", ("mark", "o")]
        if fin:
            sc, s2, st, st2 = self.stage2(q, 2)
            d = self.ACC + 32 * q
            rs = [f"s_cmp_eq_u32 {s(S_N)}, 0|s_cselect_b32 {s(S_T1)}, 0x{WS_DUM:x}, {s(S_XI)}",
                  f"buffer_load_dwordx4 {v(self.RES,4)}, v1, {s(SRD_WS,4)}, {s(S_T1)} offen sc1 #rs",
                  f"s_add_u32 {s(S_XI)}, {s(S_XI)}, 65536"]
            kp = ["@wait vm=rs"] + [mf(self.KEPT + 4 * b, v(self.SEL + 4 * b, 4), v(self.RES, 4), v(d + 4 * b, 4)) for b in range(2)]
            xp_i, xp_c, pf = self.fetch(a, 2)
        if tail:
            sg = ["@wait vm=o|s_barrier"] + signal()
            if fin:
                sched(a, [None] * len(ms), {}, {}, [(0, xp_i + rs + s1 + xp_c + ["s_barrier"] + pf + sc + sg + s2 + kp)], "b tail")
            else:
                sched(a, [None] * len(ms), {}, {}, [(0, s1 + sg)], "b tail")
            return
        p, r, bs = self.feed(a, par, pre, [0, 6, None, 18], HBLK, "o,f" if fin else "o", lg={0: "ex"} if fin else {})
        if fin:
            pre[bs[1]] = [("chk", "xp")] + pre[bs[1]]
            sg2 = signal((S_T2, (256 << OPT["fs"]) - 3 * FST()))
            streams = [(0, xp_i + rs + s1), (0, p), (0, r),
                       (bs[1] - 3, xp_c + [("mark", "xp"), bs[1]] + pf + sc + [("after", "g0")] + sg2 + [OPT["b_s2"]] + s2 + st + kp + [bs[0]] + st2)]
        else:
            streams = [(0, s1), (0, p), (0, r)]
        self.marks = sched(a, ms, pre, post, streams, self.name)

    def fetch(self, a, lag):
        xp_i, xp_c = poll(a, self.VXF, self.VXD, "xp", s(S_E0))
        pf = [("after", "o"), f"s_sub_u32 {s(S_E1)}, {s(S_OB)}, {262144*lag}",
              f"s_cmp_lt_u32 {s(S_N)}, {lag}|s_cselect_b32 {s(S_E1)}, {s(S_TG2)}, {s(S_E1)}"]
        pf += [f"buffer_load_dwordx4 {v(self.PF+4*j,4)}, v1, {s(SRD_WS,4)}, {s(S_E1)} offen offset:{1024*j} sc1 #pf" for j in range(4)]
        return [f"s_sub_u32 {s(S_E0)}, {s(S_PO)}, {(lag+1)*FST()}", xp_i], ["@wait vm=xp", xp_c], pf

    def first_reads(self, a, par):
        a.i(f"s_mov_b32 {s(S_TG2)}, 0x{WS_DUM:x}")
        a.srd(SRD_OUT, ptr(KA_WS), WS_DUM, XBYTES)
        super().first_reads(a, par)

    def finish(self, a):
        if self.fin:
            sc, s2, st, st2 = self.stage2(0, 1)
            xp_i, xp_c, pf = self.fetch(a, 1)
            for x in xp_i + xp_c + ["s_barrier"] + pf + sc + s2:
                if not isinstance(x, tuple):
                    a.emit(x)


def placement():
    tab = []
    for x in range(4):
        qs = [C_Q + 4 * x + j for j in range(4)]
        os_ = [C_O + 2 * x + j for j in range(2)]
        as_ = [C_A + 5 * x + j for j in range(5)]
        bs = [C_B + 5 * x + j for j in range(5)]
        tab += [qs[0], qs[1], os_[0], as_[0], as_[1], bs[0], bs[1], bs[2],
                qs[2], qs[3], os_[1], as_[2], as_[3], as_[4], bs[3], bs[4]]
    assert sorted(tab) == list(range(64))
    return tab


def build():
    a = E()
    kn = NAME + "_kernel"
    if OPT["stamp"]:
        a.i(f"s_memrealtime {s(S_STAMP+2,2)}")
    a.i(f"s_load_dwordx16 {s(S_PTR,16)}, s[0:1], 0x0")
    a.i(f"s_load_dwordx4 {s(S_PTR+16,4)}, s[0:1], 0x40")
    a.i(f"s_load_dwordx2 {s(S_PTR+20,2)}, s[0:1], 0x50")
    a.i("s_cmp_lt_u32 s2, 256")
    a.i("s_cbranch_scc1 L_go")
    a.i("s_endpgm")
    a.label("L_go")
    a.i("v_lshrrev_b32 v1, 6, v0")
    a.i(f"v_readfirstlane_b32 {s(S_WAVE)}, v1")
    a.i("v_and_b32 v0, 63, v0")
    a.i("v_lshlrev_b32 v1, 4, v0")
    la = {1: 0, 2: 1, 4: 2}[OPT["amap"]]
    a.i(f"s_and_b32 {s(S_T0)}, s2, 7")
    a.i(f"s_lshr_b32 {s(S_T1)}, s2, 3")
    a.i(f"s_lshr_b32 {s(S_RHO)}, {s(S_T0)}, {la+1}")
    a.i(f"s_lshl_b32 {s(S_RHO)}, {s(S_RHO)}, {la}")
    a.i(f"s_and_b32 {s(S_T2)}, {s(S_T1)}, {(1 << la) - 1}")
    a.i(f"s_add_u32 {s(S_RHO)}, {s(S_RHO)}, {s(S_T2)}")
    a.i(f"s_and_b32 {s(S_T0)}, {s(S_T0)}, {(2 << la) - 1}")
    a.i(f"s_lshl_b32 {s(S_T0)}, {s(S_T0)}, {5-la}")
    a.i(f"s_lshr_b32 {s(S_T1)}, {s(S_T1)}, {la}")
    a.i(f"s_add_u32 {s(S_T0)}, {s(S_T0)}, {s(S_T1)}")
    tab = placement()
    a.i(f"s_lshr_b32 {s(S_T1)}, {s(S_T0)}, 2")
    for j in range(16):
        w = sum(tab[4 * j + e] << (8 * e) for e in range(4))
        a.i(f"s_cmp_eq_u32 {s(S_T1)}, {j}")
        a.i(f"s_cselect_b32 {s(S_C)}, 0x{w:x}, {s(S_C)}" if j else f"s_mov_b32 {s(S_C)}, 0x{w:x}")
    a.i(f"s_and_b32 {s(S_T0)}, {s(S_T0)}, 3")
    a.i(f"s_lshl_b32 {s(S_T0)}, {s(S_T0)}, 3")
    a.i(f"s_lshr_b32 {s(S_C)}, {s(S_C)}, {s(S_T0)}")
    a.i(f"s_and_b32 {s(S_C)}, {s(S_C)}, 63")
    a.i(f"s_lshl_b32 {s(S_T0)}, {s(S_RHO)}, 6")
    a.i(f"s_add_u32 {s(S_T0)}, {s(S_T0)}, {s(S_C)}")
    a.i(f"s_lshl_b32 {s(S_T0)}, {s(S_T0)}, {OPT['fs']}")
    a.i(f"s_add_u32 {s(S_T0)}, {s(S_T0)}, 0x{WS_FL:x}")
    a.i(f"s_add_u32 {s(S_SG)}, {s(S_T0)}, {2*FST()}")
    a.i(f"s_cmp_eq_u32 {s(S_WAVE)}, 1")
    a.i(f"s_cselect_b32 {s(S_SG)}, {s(S_SG)}, 0x{WS_DUM + MB1:x}")
    a.i(f"s_lshl_b32 {s(S_T1)}, {s(S_WAVE)}, {8+OPT['fs']}")
    a.i(f"s_add_u32 {s(S_T0)}, {s(S_T0)}, {s(S_T1)}")
    a.i(f"s_sub_u32 {s(S_T0)}, {s(S_T0)}, {FST()}")
    a.i(f"s_cmp_ge_u32 {s(S_WAVE)}, 2")
    a.i(f"s_cselect_b32 {s(S_T0)}, {s(S_T0)}, 0x{WS_DUM:x}")
    a.i(f"s_cmp_lt_u32 {s(S_C)}, {C_O}")
    a.i(f"s_cselect_b32 {s(S_N)}, 33, 32")
    a.i("v_subrev_u32 v2, 3, v0")
    a.i(f"v_cmp_gt_u32 vcc, {s(S_N)}, v2")
    a.i(f"v_lshlrev_b32 v3, {9+OPT['fs']}, v0")
    a.i(f"v_min_u32 v{VSIG}, 1, v0")
    a.i("v_cndmask_b32 v2, 0, -1, vcc")
    a.i(f"v_lshlrev_b32 v{VSIG}, 30, v{VSIG}")
    a.i(f"s_lshl_b32 {s(S_T1)}, s2, 2")
    a.i(f"s_add_u32 {s(S_T1)}, {s(S_T1)}, {s(S_WAVE)}")
    a.i(f"s_mul_i32 {s(S_T1)}, {s(S_T1)}, 384")
    a.i(f"s_add_u32 {s(S_T1)}, {s(S_T1)}, 0x{WS_STQ + 131072:x}")
    if OPT["pfq"]:
        a.i(f"s_lshr_b32 {s(S_T2)}, s2, 3")
        a.i(f"s_lshl_b32 {s(S_T2)}, {s(S_T2)}, 2")
        a.i(f"s_add_u32 {s(S_T2)}, {s(S_T2)}, {s(S_WAVE)}")
        a.i(f"s_mul_i32 {s(S_T2)}, {s(S_T2)}, {8*6144}")
        a.i(f"s_and_b32 {s(S_N)}, s2, {(2 << la) - 1}")
        a.i(f"s_lshl_b32 {s(S_N)}, {s(S_N)}, {10-la}")
        a.i(f"s_add_u32 {s(S_T2)}, {s(S_T2)}, {s(S_N)}")
        a.i("v_lshrrev_b32 v6, 3, v0")
        a.i("v_mul_u32_u24 v6, 6144, v6")
        a.i(f"v_and_b32 v7, {(8 >> la) - 1}, v0")
        a.i("v_lshl_add_u32 v6, v7, 7, v6")
    if OPT["cpf"]:
        a.i(f"s_getpc_b64 {s(SRD_X,2)}")
        a.label("L_pc")
        a.i(f"s_sub_u32 {s(SRD_X)}, {s(SRD_X)}, L_pc-{kn}")
        a.i(f"s_subb_u32 {s(SRD_X+1)}, {s(SRD_X+1)}, 0")
        a.i(f"s_mov_b32 {s(SRD_X+2)}, L_code_end-{kn}")
        a.i(f"s_mov_b32 {s(SRD_X+3)}, 0x00020000")
        a.i("v_lshlrev_b32 v7, 7, v0")
        a.i(f"s_lshl_b32 {s(S_KW)}, {s(S_WAVE)}, 13")
    for r in range(8, 12):
        a.i(f"v_mov_b32 v{r}, -1")
    a.i("s_waitcnt lgkmcnt(0)")
    if OPT["stamp"]:
        for j in range(3):
            a.i(f"v_mov_b32 v{V_STAMP+j}, {s(S_STAMP+2)}")
    ws = ptr(KA_WS)
    if OPT["pfq"]:
        a.srd(SRD_W, ptr(KA_WQKV), 0, D_ * 3 * D_ * 2)
        for pn in range(3):
            a.i(f"buffer_load_dword v{253+pn}, v6, {s(SRD_W,4)}, {s(S_T2)} offen offset:{(pn & 1) * 2048}")
            if pn == 1:
                a.i(f"s_add_u32 {s(S_T2)}, {s(S_T2)}, 4096")
    a.srd(SRD_WS, ws, 0, WS_BYTES)
    a.i("s_mov_b32 exec_hi, 31")
    a.i(f"buffer_store_dword v2, v3, {s(SRD_WS,4)}, {s(S_T0)} offen sc1")
    a.i("s_mov_b64 exec, 0xffffff")
    a.i(f"buffer_store_dwordx4 v[8:11], v1, {s(SRD_WS,4)}, {s(S_T1)} offen sc1")
    a.i("s_mov_b64 exec, -1")
    roles = [(C_Q, Q()), (C_O, O()), (C_A, A()), (C_S, None), (C_B, B(True)), (C_B + 16, B(False))]
    for c0, r in reversed(roles[1:]):
        a.i(f"s_cmp_ge_u32 {s(S_C)}, {c0}")
        a.i(f"s_cbranch_scc1 L_role_{c0}")
    for c0, r in roles:
        a.label(f"L_role_{c0}")
        a.reset_hist()
        a.mark("role")
        a.i(f"s_sub_u32 {s(S_IDX)}, {s(S_C)}, {min(c0, C_B)}")
        if OPT["cpf"] and r is not None:
            a.i(f"s_add_u32 {s(S_KW)}, {s(S_KW)}, L_role_{c0}-{kn}")
            a.i(f"buffer_load_dword v252, v7, {s(SRD_X,4)}, {s(S_KW)} offen")
        if r is None or (OPT["only"] and not (OPT["only"] >> roles.index((c0, r))) & 1):
            a.i("s_waitcnt vmcnt(0)")
            a.i("s_barrier")
            arrive(a)
            a.i("s_endpgm")
        else:
            r.gen(a)
    a.label("L_code_end")
    a.i("s_endpgm")
    a.resolve()
    hdr = open(os.path.join(os.path.dirname(os.path.abspath(__file__)), "header.txt")).read()
    out = hdr + f"; @launch grid=(256,1,1) block=(256,1,1) lds={LDS_BYTES}\n"
    out += "; Generated by gen/gen3.py (hand-written generator).  One persistent kernel, 256 workgroups (one per CU), a\n"
    out += "; weight-stationary pipeline: every workgroup keeps one weight tile in registers; blocks of 32 rows stream through\n"
    out += "; qkv(+LN fold, local attention) -> wo(+residual) -> w1(+LN fold, bias, relu^2) -> w2(split-K 5, +bias, residual), twice.\n"
    out += "; Hand-offs: write-through stores + progress words in d_ws (reset at start, guarded by counters in d_debug);\n"
    out += "; s_sleep appears only as back-off inside (bounded) polls.\n"
    out += '.amdgcn_target "amdgcn-amd-amdhsa--gfx950"\n'
    out += f".text\n.globl {kn}\n.p2align 8\n.type {kn},@function\n{kn}:\n" + a.text()
    out += ('.section .rodata,"a"\n.p2align 6\n'
            f".amdhsa_kernel {kn}\n  .amdhsa_next_free_vgpr 512\n  .amdhsa_next_free_sgpr 102\n  .amdhsa_accum_offset 256\n"
            "  .amdhsa_group_segment_fixed_size 0\n  .amdhsa_kernarg_size 88\n  .amdhsa_user_sgpr_count 2\n"
            "  .amdhsa_user_sgpr_kernarg_segment_ptr 1\n  .amdhsa_system_sgpr_workgroup_id_x 1\n.end_amdhsa_kernel\n")
    return out


if __name__ == "__main__":
    outp = os.path.join(os.path.dirname(os.path.abspath(__file__)), "..", NAME + ".s")
    for arg in sys.argv[1:]:
        if arg.startswith("-o"):
            outp = arg[2:]
        elif "=" in arg:
            kk, vv = arg.split("=")
            assert kk in OPT, kk
            OPT[kk] = int(vv)
    open(outp, "w").write(build())
    print("wrote", outp)
```
